```python
import torch

def _softmax(x, axis=-1):
    return torch.softmax(x, dim=axis)
def _gelu(x):
    return torch.nn.functional.gelu(x, approximate="tanh")
def _silu(x):
    return torch.nn.functional.silu(x)
def _sigmoid(x):
    return torch.sigmoid(x)
def _layernorm(x, axis=-1, eps=1e-5):
    m = x.mean(dim=axis, keepdim=True)
    v = x.var(dim=axis, keepdim=True, unbiased=False)
    return (x - m) / torch.sqrt(v + eps)
def _scatter_add(tgt, idx, src, axis=0):
    return tgt.clone().index_add_(axis, idx, src)
def _segment_sum(src, seg, n):
    out = torch.zeros((n,) + src.shape[1:], dtype=src.dtype)
    return out.index_add_(0, seg, src)
def _pad(x, pw):
    flat = tuple(v for pair in reversed(pw) for v in pair)
    return torch.nn.functional.pad(x, flat)

kernel_name = 'gated_mix__ssm_conv_h3__glu_gated_reglu__prompt'

def setup_inputs():

    _w = (lambda a: (lambda t: t.to(torch.bfloat16) if t.is_floating_point() else t)(torch.as_tensor(a)))
    def _A_setup():
        B, S, D = 1, 2048, 512
        ks = 4
        return {
            "q": _w((lambda *s: torch.randn(*s, dtype=torch.bfloat16) * 0.05)(B, S, D)),
            "k": _w((lambda *s: torch.randn(*s, dtype=torch.bfloat16) * 0.05)(B, S, D)),
            "v": _w((lambda *s: torch.randn(*s, dtype=torch.bfloat16) * 0.05)(B, S, D)),
            "shift_k": _w((lambda *s: torch.randn(*s, dtype=torch.bfloat16) * 0.05)(D, ks) * 0.5),
            "ssm_k": _w((lambda *s: torch.randn(*s, dtype=torch.bfloat16) * 0.05)(D, S) * (1.0 / S ** 0.5)),
            "ssm_D": _w((lambda *s: torch.randn(*s, dtype=torch.bfloat16) * 0.05)(D)),
        }
    _A_in = _A_setup()

    def _B_setup():
        B, S, D, F = 1, 2048, 512, 1792
        return {
            "x": _w((lambda *s: torch.randn(*s, dtype=torch.bfloat16) * 0.05)(B, S, D)),
            "W_gate": _w((lambda *s: torch.randn(*s, dtype=torch.bfloat16) * 0.05)(D, F) * (2.0 / D) ** 0.5),
            "W_up": _w((lambda *s: torch.randn(*s, dtype=torch.bfloat16) * 0.05)(D, F) * (2.0 / D) ** 0.5),
            "W_down": _w((lambda *s: torch.randn(*s, dtype=torch.bfloat16) * 0.05)(F, D) * (1.0 / F) ** 0.5),
        }
    _B_in = _B_setup()

    return {
        "A_q": _A_in["q"],
        "A_k": _A_in["k"],
        "A_v": _A_in["v"],
        "A_shift_k": _A_in["shift_k"],
        "A_ssm_k": _A_in["ssm_k"],
        "A_ssm_D": _A_in["ssm_D"],
        "B_x": _B_in["x"],
        "B_W_gate": _B_in["W_gate"],
        "B_W_up": _B_in["W_up"],
        "B_W_down": _B_in["W_down"],
        "gate_w": _w((lambda *s: torch.randn(*s, dtype=torch.bfloat16) * 0.05)(512) * 16.0),
    }

def reference(A_q, A_k, A_v, A_shift_k, A_ssm_k, A_ssm_D, B_x, B_W_gate, B_W_up, B_W_down, gate_w):
    def _A_ref(q, k, v, shift_k, ssm_k, ssm_D):
        B, S, D = q.shape
        ks = shift_k.shape[-1]
        k_pad = _pad(k, ((0, 0), (ks - 1, 0), (0, 0)))
        k_shift = torch.zeros_like(k)
        for t in range(ks):
            k_shift = k_shift + k_pad[:, t:t + S, :] * shift_k[:, ks - 1 - t][None, None, :]
        kv = k_shift * v
        L = 2 * S
        kv_pad = _pad(kv, ((0, 0), (0, S), (0, 0)))
        kf_pad = _pad(ssm_k, ((0, 0), (0, S)))
        kv_f = (lambda x, axes=(-2,-1): torch.fft.rfft2(x.float(), dim=axes))(kv_pad[:, None, :, :], axes=(1, 2))
        kf_f = (lambda x, axes=(-2,-1): torch.fft.rfft2(x.float(), dim=axes))(kf_pad[:, None, :], axes=(1, 2))
        kf_f = (lambda x, *d: x.permute(*d))(kf_f, 1, 2, 0)
        y_f = kv_f * kf_f[None, :, :, :]
        y = (lambda x, s, axes=(-2,-1): torch.fft.irfft2(x, s=s, dim=axes).to(torch.bfloat16))(y_f, (1, L), axes=(1, 2))[:, 0, :S, :]
        y = y + kv * ssm_D[None, None, :]
        return q * y

    def _B_ref(x, W_gate, W_up, W_down):
        gate = torch.einsum("bsd,df->bsf", x, W_gate)
        up = torch.einsum("bsd,df->bsf", x, W_up)
        gate = gate * (lambda x, dt: x.to(dt))(gate > 0, gate.dtype)
        h = gate * up
        return torch.einsum("bsf,fd->bsd", h, W_down)

    x = A_q
    g = _sigmoid((x * gate_w).sum(-1, keepdims=True))
    a = _A_ref(x, A_k, A_v, A_shift_k, A_ssm_k, A_ssm_D)
    b = _B_ref(x, B_W_gate, B_W_up, B_W_down)
    return g * a + (1 - g) * b
```

```python
import re

REG_RE = re.compile(r'(?<![\w.])(-?)(abs\()?([vas])(\d+|\[(\d+):(\d+)\])')
def regs_of(tok):
    tok = tok.strip()
    out = []
    if tok in ('vcc',): return ['vcc']
    if tok in ('exec',): return ['exec']
    if tok == 'm0': return ['m0']
    if tok in ('vcc_lo', 'vcc_hi'): return ['vcc']
    if tok in ('exec_lo', 'exec_hi'): return ['exec']
    m = re.fullmatch(r'-?(?:abs\()?\|?([vas])(\d+)\|?\)?', tok)
    if m: return [m.group(1) + m.group(2)]
    m = re.fullmatch(r'-?([vas])\[(\d+):(\d+)\]', tok)
    if m: return [m.group(1) + str(i) for i in range(int(m.group(2)), int(m.group(3)) + 1)]
    return []

TRANS = ('v_exp_f32', 'v_log_f32', 'v_rcp_f32', 'v_rsq_f32', 'v_sqrt_f32', 'v_sin_f32', 'v_cos_f32')
RMW = ('v_fmac_f32', 'v_dot2c_f32_bf16', 'v_pk_fmac_f16', 'v_writelane_b32')

class Ins:
    __slots__ = ('text', 'op', 'kind', 'rd', 'wr', 'tag', 'passes', 'srcC', 'srcAB', 'wide', 'dpp', 'size', 'extra')
    def __init__(self, text, tag=None):
        self.text = text; self.tag = tag; self.passes = 0; self.srcC = []; self.srcAB = []; self.wide = False; self.dpp = False
        self.extra = None
        t = text.split(';')[0].strip()
        if t.endswith(':'):
            self.op = t; self.kind = 'label'; self.rd = []; self.wr = []; return
        if t.startswith('.'):
            self.op = t; self.kind = 'directive'; self.rd = []; self.wr = []; return
        parts = t.split(None, 1)
        op = parts[0]; self.op = op
        rest = parts[1] if len(parts) > 1 else ''
        ops = [o.strip() for o in re.split(r',(?![^\[\(]*[\]\)])', rest)] if rest else []
        mods = ''
        if ops:
            lp = ops[-1].split(None, 1)
            if lp:
                ops[-1] = lp[0]; mods = lp[1] if len(lp) > 1 else ''
        R = [regs_of(o) for o in ops]
        allr = lambda lst: [x for l in lst for x in l]
        base = re.sub(r'_(e32|e64|dpp|sdwa)$', '', op)
        if op.startswith('v_mfma'):
            self.kind = 'mfma'; self.wr = R[0]; self.srcAB = R[1] + R[2]; self.srcC = R[3]; self.rd = self.srcAB + self.srcC
            self.passes = 8 if '32x32' in op else 4
        elif op.startswith('v_cmp'):
            self.kind = 'valu'; self.wr = R[0]; self.rd = allr(R[1:])
        elif base in ('v_readfirstlane_b32', 'v_readlane_b32'):
            self.kind = 'valu'; self.wr = R[0]; self.rd = allr(R[1:])
        elif op.startswith('v_permlane'):
            self.kind = 'valu'; self.wr = R[0] + R[1]; self.rd = R[0] + R[1]
        elif base in ('v_add_co_u32', 'v_sub_co_u32', 'v_addc_co_u32'):
            self.kind = 'valu'; self.wr = R[0] + R[1]; self.rd = allr(R[2:])
        elif op == 'v_nop':
            self.kind = 'valu'; self.wr = []; self.rd = []
        elif op.startswith('v_'):
            self.kind = 'valu'; self.wr = R[0]; self.rd = allr(R[1:])
            if base in RMW: self.rd += R[0]
            if op.endswith('_dpp') or any(k in mods for k in ('row_', 'quad_perm', 'wave_')):
                self.dpp = True; self.rd += R[0]
        elif op.startswith('ds_read') or op.startswith('ds_bpermute') or op.startswith('ds_swizzle'):
            self.kind = 'dsr'; self.wr = R[0]; self.rd = allr(R[1:])
        elif op.startswith('ds_'):
            self.kind = 'dsw'; self.wr = []; self.rd = allr(R)
        elif op.startswith('buffer_load') or op.startswith('global_load'):
            if re.search(r'\blds\b', mods) or '_lds_' in op:
                self.kind = 'dma'; self.wr = []; self.rd = allr(R) + ['m0']
            else:
                self.kind = 'vld'; self.wr = R[0]; self.rd = allr(R[1:])
        elif op.startswith('buffer_store') or op.startswith('global_store'):
            self.kind = 'vst'; self.wr = []; self.rd = allr(R)
            self.wide = op.endswith('x4') or op.endswith('x3')
            self.extra = R[0] if op.startswith('buffer') else R[1]
        elif op.startswith('buffer_atomic') or op.startswith('global_atomic'):
            self.kind = 'vst'; self.rd = allr(R); self.wr = R[0] if re.search(r'\bsc0\b', mods) else []
            if self.wr: self.kind = 'vld'
        elif op in ('buffer_wbl2', 'buffer_inv'):
            self.kind = 'vst'; self.rd = []; self.wr = []
        elif op.startswith('s_load') or op.startswith('s_buffer_load') or op in ('s_memtime', 's_memrealtime'):
            self.kind = 'smem'; self.wr = R[0]; self.rd = allr(R[1:])
        elif op == 's_waitcnt': self.kind = 'wait'; self.rd = []; self.wr = []
        elif op == 's_nop': self.kind = 'nop'; self.rd = []; self.wr = []; self.extra = int(ops[0], 0) + 1
        elif op in ('s_barrier', 's_endpgm', 's_setprio', 's_sleep'): self.kind = 'sctl'; self.rd = []; self.wr = []
        elif op.startswith('s_cbranch') or op == 's_branch':
            self.kind = 'branch'; self.wr = []; self.rd = ['vcc'] if 'vcc' in op else (['exec'] if 'exec' in op else [])
        elif op.startswith('s_cmp') or op.startswith('s_bitcmp'):
            self.kind = 'salu'; self.wr = []; self.rd = allr(R)
        elif op.startswith('s_'):
            self.kind = 'salu'; self.wr = list(R[0]); self.rd = allr(R[1:])
            if 'saveexec' in op: self.wr += ['exec']; self.rd += ['exec']
            if op in ('s_addk_i32', 's_mulk_i32'): self.rd += R[0]
        else:
            raise ValueError('unknown instruction: ' + text)

VM = ('vld', 'vst', 'dma')
LG = ('dsr', 'dsw', 'smem')

class Asm:
    def __init__(self):
        self.ins = []
        self.nlabel = 0
    def __call__(self, text, tag=None):
        for line in text.split('\n'):
            line = line.strip()
            if not line or line.startswith(';'): continue
            self.ins.append(Ins(line, tag))
        return self
    def add(self, ins): self.ins.append(ins)
    def label(self, name): self.ins.append(Ins(name + ':'))
    def newlabel(self, base='L'):
        self.nlabel += 1; return f'{base}_{self.nlabel}'
    def wait_vm(self, tag):
        i = Ins('s_waitcnt vmcnt(0)'); i.kind = 'waitvm'; i.extra = tag; self.ins.append(i)
    def wait_lg(self, tag):
        i = Ins('s_waitcnt lgkmcnt(0)'); i.kind = 'waitlg'; i.extra = tag; self.ins.append(i)
    def fence(self):
        self('s_waitcnt vmcnt(0) lgkmcnt(0)')

def match(tag, want):
    if tag is None: return False
    if isinstance(want, (list, tuple, set)): return any(match(tag, w) for w in want)
    return tag == want

def insert_waits(ins):
    out = []
    vm = []
    lg = []
    def emit_wait(nvm=None, nlg=None):
        parts = []
        if nvm is not None:
            nvm = min(nvm, 63); parts.append(f'vmcnt({nvm})'); del vm[:max(0, len(vm) - nvm)]
        if nlg is not None:
            if any(o.kind == 'smem' for o in lg): nlg = 0
            nlg = min(nlg, 15); parts.append(f'lgkmcnt({nlg})'); del lg[:max(0, len(lg) - nlg)]
        if parts:
            w = Ins('s_waitcnt ' + ' '.join(parts)); out.append(w)
    for I in ins:
        if I.kind == 'waitvm':
            idx = [k for k, o in enumerate(vm) if match(o.tag, I.extra)]
            if idx: emit_wait(nvm=len(vm) - 1 - idx[-1])
            continue
        if I.kind == 'waitlg':
            idx = [k for k, o in enumerate(lg) if match(o.tag, I.extra)]
            if idx: emit_wait(nlg=len(lg) - 1 - idx[-1])
            continue
        if I.kind == 'wait':
            m = re.search(r'vmcnt\((\d+)\)', I.text)
            if m: n = int(m.group(1)); del vm[:max(0, len(vm) - n)]
            m = re.search(r'lgkmcnt\((\d+)\)', I.text)
            if m:
                n = int(m.group(1))
                if n == 0: lg.clear()
                elif not any(o.kind == 'smem' for o in lg): del lg[:max(0, len(lg) - n)]
            out.append(I); continue
        touched = set(I.rd) | set(I.wr)
        nvm = nlg = None
        if touched:
            for k in range(len(vm) - 1, -1, -1):
                if vm[k].wr and touched & set(vm[k].wr):
                    if I.kind == 'vld' and not (set(I.rd) & set(vm[k].wr)): continue
                    nvm = len(vm) - 1 - k; break
            for k in range(len(lg) - 1, -1, -1):
                if lg[k].wr and touched & set(lg[k].wr):
                    nlg = len(lg) - 1 - k; break
        if nvm is not None or nlg is not None: emit_wait(nvm, nlg)
        out.append(I)
        if I.kind in VM:
            vm.append(I)
            if len(vm) > 63: del vm[0]
        if I.kind in LG: lg.append(I)
        if I.op == 's_endpgm': vm.clear(); lg.clear()
    return out

def need_states(P, C):
    n = 0
    pw = set(P.wr); crd = set(C.rd); cwr = set(C.wr)
    isv = lambda s: {r for r in s if r[0] in 'va' and r != 'vcc'}
    iss = lambda s: {r for r in s if r[0] == 's' or r == 'vcc'}
    if P.kind == 'valu':
        pv = isv(pw); ps = iss(pw)
        if C.kind == 'mfma' and pv & crd: n = max(n, 2)
        if C.kind == 'valu':
            if pv & crd:
                if C.op.startswith('v_permlane') or C.dpp: n = max(n, 2)
                if C.op.startswith('v_readlane') or C.op.startswith('v_readfirstlane'): n = max(n, 1)
                if re.sub(r'_(e32|e64)$', '', P.op) in TRANS and re.sub(r'_(e32|e64)$', '', C.op) not in TRANS: n = max(n, 1)
            if ps & crd:
                n = max(n, 4 if (C.op.startswith('v_readlane') or C.op.startswith('v_writelane')) else 2)
        if C.kind in VM and ps & crd: n = max(n, 5)
        if 'exec' in pw and C.kind == 'mfma': n = max(n, 4)
    if P.op.startswith('v_dot'):
        if C.op == P.op:
            ops = C.text.split(';')[0].split(None, 1)[1].split(',')
            ab = set(regs_of(ops[1]) + regs_of(ops[2]))
            if pw & ab: n = max(n, 3)
        elif pw & (crd | cwr): n = max(n, 3)
    if P.kind == 'mfma':
        big = P.passes == 8
        if C.kind == 'mfma':
            if pw & set(C.srcAB): n = max(n, 12 if big else 8)
            if pw & set(C.srcC) and not (P.wr == C.srcC and P.passes == C.passes): n = max(n, 10 if big else 6)
            if pw & cwr and not (P.wr == C.wr and P.wr == C.srcC): n = max(n, 12 if big else 8)
        elif C.kind in ('valu', 'dsr', 'dsw') + VM:
            if pw & (crd | cwr): n = max(n, 12 if big else 8)
            if C.kind == 'valu' and set(P.srcC) & cwr: n = max(n, 7 if big else 3)
    if P.kind == 'salu' and 'm0' in pw and C.kind == 'dma': n = max(n, 1)
    if P.kind == 'vst' and P.wide and set(P.extra) & cwr: n = max(n, 2 if C.kind == 'valu' else 1)
    return n

def insert_nops(ins, window=24):
    out = []
    for I in ins:
        if I.kind in ('label', 'directive'):
            out.append(I); continue
        need = 0; dist = 0
        for P in reversed(out):
            if P.kind in ('label', 'directive'): continue
            r = need_states(P, I)
            if r > dist: need = max(need, r - dist)
            dist += P.extra if P.kind == 'nop' else 1
            if dist >= window: break
        while need > 0:
            k = min(need, 16); out.append(Ins(f's_nop {k-1}')); need -= k
        out.append(I)
    return out

def finalize(asm):
    ins = insert_waits(asm.ins)
    ins = insert_nops(ins)
    return '\n'.join((I.text if I.kind == 'label' else '    ' + I.text) for I in ins)

def stats(text):
    from collections import Counter
    c = Counter()
    for l in text.split('\n'):
        l = l.strip()
        if l and not l.endswith(':') and not l.startswith(';') and not l.startswith('.'):
            c[l.split()[0]] += 1
    return c
```

```python
import sys
from asmlib import *

NAME = 'gated_mix__ssm_conv_h3__glu_gated_reglu__prompt'
S, D, F = 2048, 512, 1792
WS_KVT = 0
WS_Y = 2 << 20
WS_H = 4 << 20
WS_G = 12 << 20
WS_FLAG = 13 << 20
WS_SIZE = 16 << 20

sW, sXCD, sJ = 's4', 's5', 's6'
SRD_Q, SRD_K, SRD_V, SRD_SH, SRD_SK, SRD_W, SRD_WD, SRD_GW, SRD_OUT, SRD_WS, SRD_DBG = \
    ['s[%d:%d]' % (8 + 4 * i, 11 + 4 * i) for i in range(11)]
sDP = (52, 53)

def prologue(a, nwg=256):
    a(f'''s_cmp_ge_u32 s2, {nwg}
          s_cbranch_scc1 L_end_{a.kname}
          s_load_dwordx16 s[56:71], s[0:1], 0
          s_load_dwordx8 s[72:79], s[0:1], 64
          s_load_dwordx4 s[80:83], s[0:1], 96
          v_lshrrev_b32 v1, 6, v0
          s_and_b32 {sXCD}, s2, 7
          v_readfirstlane_b32 {sW}, v1
          s_lshr_b32 {sJ}, s2, 3
          v_and_b32 v0, 63, v0
          s_waitcnt lgkmcnt(0)''')
    def srd(base, lo, size):
        a(f'''s_mov_b32 s{base}, s{lo}
              s_mov_b32 s{base+1}, s{lo+1}
              s_mov_b32 s{base+2}, {size}
              s_mov_b32 s{base+3}, 0x20000''')
    srd(8, 56, S*D*2); srd(12, 58, S*D*2); srd(16, 60, S*D*2); srd(20, 62, D*8); srd(24, 64, D*S*2)
    a(f'''s_cmp_lt_u32 {sW}, 2
          s_cselect_b32 s28, s70, s72
          s_cselect_b32 s29, s71, s73
          s_mov_b32 s30, {D*F*2}
          s_mov_b32 s31, 0x20000''')
    srd(32, 74, F*D*2); srd(36, 76, D*2); srd(40, 78, S*D*2); srd(44, 82, WS_SIZE); srd(48, 80, 256)
    a('s_mov_b32 s52, s66\ns_mov_b32 s53, s67')

def gate_rows(a, srow, vt, st, sc=''):
    q0, q1, gw, ad, z0, z1 = vt, vt+4, vt+8, vt+12, vt+13, vt+14
    a(f'''s_lshl_b32 s{st}, {sW}, 1
          s_add_u32 s{st}, s{st}, {srow}
          s_lshl_b32 s{st+1}, s{st}, 10
          v_lshlrev_b32 v{ad}, 4, v0
          buffer_load_dwordx4 v[{gw}:{gw+3}], v{ad}, {SRD_GW}, 0 offen
          buffer_load_dwordx4 v[{q0}:{q0+3}], v{ad}, {SRD_Q}, s{st+1} offen
          buffer_load_dwordx4 v[{q1}:{q1+3}], v{ad}, {SRD_Q}, s{st+1} offen offset:1024''')
    for i in range(4):
        a(f'v_dot2_f32_bf16 v{z0}, v{q0+i}, v{gw+i}, ' + ('0' if i == 0 else f'v{z0}'))
        a(f'v_dot2_f32_bf16 v{z1}, v{q1+i}, v{gw+i}, ' + ('0' if i == 0 else f'v{z1}'))
    for r in (8, 4, 2, 1):
        a(f'v_add_f32_dpp v{z0}, v{z0}, v{z0} row_ror:{r} row_mask:0xf bank_mask:0xf')
        a(f'v_add_f32_dpp v{z1}, v{z1}, v{z1} row_ror:{r} row_mask:0xf bank_mask:0xf')
    a(f'''v_permlane16_swap_b32 v{z0}, v{z1}
          v_add_f32 v{z0}, v{z0}, v{z1}
          v_mov_b32 v{z1}, v{z0}
          v_permlane32_swap_b32 v{z0}, v{z1}
          v_add_f32 v{z0}, v{z0}, v{z1}
          v_cvt_pk_bf16_f32 v{z0}, v{z0}, v{z0}
          v_and_b32 v{z0}, 0xffff0000, v{z0}
          v_mul_f32 v{z0}, 0xbfb8aa3b, v{z0}
          v_exp_f32 v{z0}, v{z0}
          v_add_f32 v{z0}, 1.0, v{z0}
          v_rcp_f32 v{z0}, v{z0}
          v_cvt_pk_bf16_f32 v{z0}, v{z0}, v{z0}
          v_and_b32 v{q0}, 0xffff0000, v{z0}
          v_sub_f32 v{z0}, 1.0, v{q0}
          v_cvt_pk_bf16_f32 v{z0}, v{z0}, v{z0}
          v_and_b32 v{q0+1}, 0xffff0000, v{z0}
          v_lshrrev_b32 v{ad}, 1, v0
          s_lshl_b32 s{st}, s{st}, 3
          s_add_u32 s{st}, s{st}, {WS_G}
          s_mov_b64 exec, 0x10001
          buffer_store_dwordx2 v[{q0}:{q0+1}], v{ad}, {SRD_WS}, s{st} offen {sc}
          s_mov_b64 exec, -1''', tag='gst')

def p0(a, lds, vt, st, sc=''):
    KB, VB, TB = lds, lds + 9*1024, lds + 17*1024
    ko, kh, sh, tmp = vt, vt+1, vt+2, vt+4
    P = vt + 6
    Vv = vt + 16
    Q = vt + 24
    R = vt + 34
    O = vt + 50
    a(f'''v_lshrrev_b32 v{tmp}, 3, v0
          v_lshlrev_b32 v{tmp}, 10, v{tmp}
          v_and_b32 v{ko}, 7, v0
          v_lshl_add_u32 v{ko}, v{ko}, 4, v{tmp}
          s_lshl_b32 s{st}, {sJ}, 16
          s_lshl_b32 s{st+1}, {sXCD}, 7
          s_add_u32 s{st}, s{st}, s{st+1}
          v_add_u32 v{ko}, s{st}, v{ko}
          v_subrev_u32 v{kh}, 8192, v{ko}
          s_cmp_lg_u32 {sW}, 0''')
    L = a.newlabel('L_nohalo')
    a(f'''s_cbranch_scc1 {L}
          s_mov_b32 m0, {KB}
          buffer_load_dwordx4 v{kh}, {SRD_K}, 0 offen lds''', tag='p0dma')
    a.label(L)
    a(f'''s_lshl_b32 s{st}, {sW}, 13
          s_add_u32 s{st+1}, s{st}, 32768
          s_lshl_b32 s{st+2}, {sW}, 10
          v_and_b32 v{tmp}, 15, v0
          v_lshlrev_b32 v{tmp}, 3, v{tmp}
          s_lshl_b32 s{st+3}, {sXCD}, 9
          s_lshl_b32 s{st+4}, {sW}, 7
          s_add_u32 s{st+3}, s{st+3}, s{st+4}''')
    for srd, base in ((SRD_K, KB + 1024), (SRD_V, VB)):
        for jj in range(2):
            a(f'''s_add_u32 m0, s{st+2}, {base + jj*4096}
                  buffer_load_dwordx4 v{ko}, {srd}, s{st+jj} offen lds''', tag='p0dma')
    a(f'''buffer_load_dwordx2 v[{sh}:{sh+1}], v{tmp}, {SRD_SH}, s{st+3} offen''')
    a(f'''v_lshrrev_b32 v{tmp}, 4, v0
          v_lshlrev_b32 v{tmp}, 11, v{tmp}
          v_bfe_u32 v{tmp+1}, v0, 2, 2
          v_lshl_add_u32 v{tmp}, v{tmp+1}, 7, v{tmp}
          v_and_b32 v{tmp+1}, 3, v0
          v_lshl_add_u32 v{tmp}, v{tmp+1}, 3, v{tmp}
          s_lshl_b32 s{st}, {sW}, 5
          s_add_u32 s{st}, s{st}, {lds}
          v_add_u32 v{tmp}, s{st}, v{tmp}''')
    a.wait_vm('p0dma')
    a('s_barrier')
    for i in range(5):
        a(f'ds_read_b64_tr_b16 v[{P+2*i}:{P+2*i+1}], v{tmp} offset:{512 + 512*i}')
    for i in range(4):
        a(f'ds_read_b64_tr_b16 v[{Vv+2*i}:{Vv+2*i+1}], v{tmp} offset:{9*1024 + 512*i}')
    a(f'''v_alignbit_b32 v{sh}, v{sh}, v{sh}, 16
          v_alignbit_b32 v{sh+1}, v{sh+1}, v{sh+1}, 16''')
    for i in range(1, 10):
        a(f'v_alignbit_b32 v{Q+i-1}, v{P+i}, v{P+i-1}, 16')
    for i in range(8):
        a(f'v_dot2_f32_bf16 v{R+2*i}, v{Q+i+1}, v{sh}, 0')
        a(f'v_dot2_f32_bf16 v{R+2*i+1}, v{P+i+2}, v{sh}, 0')
    for i in range(8):
        a(f'v_dot2_f32_bf16 v{R+2*i}, v{Q+i}, v{sh+1}, v{R+2*i}')
        a(f'v_dot2_f32_bf16 v{R+2*i+1}, v{P+i+1}, v{sh+1}, v{R+2*i+1}')
    for i in range(8):
        a(f'''v_lshlrev_b32 v{Q}, 16, v{Vv+i}
              v_and_b32 v{Vv+i}, 0xffff0000, v{Vv+i}
              v_mul_f32 v{R+2*i}, v{R+2*i}, v{Q}
              v_mul_f32 v{R+2*i+1}, v{R+2*i+1}, v{Vv+i}''')
    for j in range(2):
        for d in range(4):
            a(f'v_cvt_pk_bf16_f32 v{O+4*j+d}, v{R+8*j+7-2*d}, v{R+8*j+6-2*d}')
    a(f'''v_and_b32 v{ko}, 15, v0
          v_mul_u32_u24 v{ko}, 144, v{ko}
          v_lshrrev_b32 v{kh}, 4, v0
          v_lshl_add_u32 v{ko}, v{kh}, 5, v{ko}
          s_mul_i32 s{st}, {sW}, 2304
          s_add_u32 s{st}, s{st}, {TB}
          v_add_u32 v{ko}, s{st}, v{ko}
          ds_write_b128 v{ko}, v[{O}:{O+3}]
          ds_write_b128 v{ko}, v[{O+4}:{O+7}] offset:16
          v_lshrrev_b32 v{kh}, 3, v0
          v_mul_u32_u24 v{tmp}, 144, v{kh}
          v_and_b32 v{tmp+1}, 7, v0
          v_lshl_add_u32 v{tmp}, v{tmp+1}, 4, v{tmp}
          v_add_u32 v{tmp}, s{st}, v{tmp}
          ds_read_b128 v[{R}:{R+3}], v{tmp}
          ds_read_b128 v[{R+4}:{R+7}], v{tmp} offset:{8*144}
          v_lshlrev_b32 v{kh}, 12, v{kh}
          v_lshl_add_u32 v{kh}, v{tmp+1}, 4, v{kh}
          s_lshl_b32 s{st}, {sXCD}, 18
          s_lshl_b32 s{st+1}, {sW}, 16
          s_add_u32 s{st}, s{st}, s{st+1}
          s_lshl_b32 s{st+1}, {sJ}, 7
          s_add_u32 s{st}, s{st}, s{st+1}
          s_add_u32 s{st}, s{st}, {WS_KVT}
          s_add_u32 s{st+1}, s{st}, 32768''')
    a(f'''buffer_store_dwordx4 v[{R}:{R+3}], v{kh}, {SRD_WS}, s{st} offen {sc}
          buffer_store_dwordx4 v[{R+4}:{R+7}], v{kh}, {SRD_WS}, s{st+1} offen {sc}''', tag='kvst')

G1_XS = 16384
G1_WB = 49152
G1_WS = 28928
G1_UP = 14464
G1_END = G1_WB + 3*G1_WS

class G1:
    ACC = 16
    XR = 128
    WR = 132
    XD = 134
    WD = 138
    T = 146
    sRB, sFS, sROT, sXO, sWO, sM = 's54', 's55', 's84', 's85', 's86', 's87'
    sXC, sWC = 's88', 's89'

def g1_setup(a, rot=True):
    g = G1; T = g.T
    a(f'''s_and_b32 {g.sRB}, {sXCD}, 1
          s_lshl_b32 {g.sRB}, {g.sRB}, 3
          s_and_b32 s3, {sJ}, 7
          s_add_u32 {g.sRB}, {g.sRB}, s3
          s_lshr_b32 {g.sFS}, {sXCD}, 1
          s_lshl_b32 {g.sFS}, {g.sFS}, 2
          s_lshr_b32 s3, {sJ}, 3
          s_add_u32 {g.sFS}, {g.sFS}, s3''')
    if rot:
        a(f's_lshl_b32 {g.sROT}, {g.sFS}, 1\ns_add_u32 {g.sROT}, {g.sROT}, {g.sRB}')
    else:
        a(f's_mov_b32 {g.sROT}, 0')
    a(f'''s_lshl_b32 {g.sXO}, {g.sRB}, 17
          s_lshl_b32 s3, {sW}, 15
          s_add_u32 {g.sXO}, {g.sXO}, s3
          s_mul_i32 {g.sWO}, {g.sFS}, 224
          s_and_b32 s3, {sW}, 1
          s_mul_i32 s3, s3, {32*3584}
          s_add_u32 {g.sWO}, {g.sWO}, s3''')
    a(f'''v_lshrrev_b32 v{T}, 3, v0
          v_lshlrev_b32 v{T}, 10, v{T}
          v_lshrrev_b32 v{T+1}, 4, v0
          v_and_b32 v{T+2}, 7, v0
          v_xor_b32 v{T+1}, v{T+1}, v{T+2}
          v_lshl_add_u32 v{g.XD}, v{T+1}, 4, v{T}
          v_xor_b32 v{g.XD+1}, 64, v{g.XD}
          v_add_u32 v{g.XD+1}, {8192-1024}, v{g.XD+1}
          v_add_u32 v{g.XD+2}, {2*(8192-1024)}, v{g.XD}
          v_add_u32 v{g.XD+3}, {2*(8192-1024)}, v{g.XD+1}
          s_mov_b32 s3, {(2**32 + 13)//14}''')
    for u in range(7):
        a(f'''v_add_u32 v{T}, {64*u}, v0
              v_mul_hi_u32 v{T+1}, v{T}, s3
              v_mul_u32_u24 v{T+1}, {3584-224}, v{T+1}
              v_lshl_add_u32 v{g.WD+u}, v{T}, 4, v{T+1}''')
        if u % 4: a(f'v_subrev_u32 v{g.WD+u}, {1024*(u%4)}, v{g.WD+u}')
    a(f'''v_and_b32 v{T}, 31, v0
          v_lshrrev_b32 v{T+1}, 5, v0
          v_bfe_u32 v{T+2}, v0, 1, 3
          v_xor_b32 v{T+1}, v{T+1}, v{T+2}
          v_lshlrev_b32 v{T}, 7, v{T}
          v_lshl_add_u32 v{T}, v{T+1}, 4, v{T}
          s_lshl_b32 s3, {sW}, 12
          v_add_u32 v{g.XR}, s3, v{T}
          v_xor_b32 v{g.XR+1}, 32, v{g.XR}
          v_xor_b32 v{g.XR+2}, 64, v{g.XR}
          v_xor_b32 v{g.XR+3}, 96, v{g.XR}''')
    a(f'''v_bfe_u32 v{T}, v0, 4, 1
          v_mul_u32_u24 v{T}, {G1_UP}, v{T}
          v_lshrrev_b32 v{T+1}, 5, v0
          v_lshlrev_b32 v{T+1}, 3, v{T+1}
          v_bfe_u32 v{T+2}, v0, 2, 2
          v_add_u32 v{T+1}, v{T+1}, v{T+2}
          v_mul_u32_u24 v{T+1}, 224, v{T+1}
          v_and_b32 v{T+2}, 3, v0
          v_lshl_add_u32 v{T+1}, v{T+2}, 3, v{T+1}
          v_add_u32 v{T}, v{T}, v{T+1}
          v_add_u32 v{g.WR}, {G1_WB}, v{T}
          v_add_u32 v{g.WR+1}, {G1_WB + 2*G1_WS}, v{T}''')
    a(f'''s_lshr_b32 s3, {sW}, 1
          s_mul_i32 {g.sM}, s3, {G1_UP}
          s_and_b32 s3, {sW}, 1
          s_mul_i32 s3, s3, 7168
          s_add_u32 {g.sM}, {g.sM}, s3
          s_add_u32 {g.sM}, {g.sM}, {G1_WB}
          s_lshl_b32 s90, {sW}, 12''')

def g1_dma_items(c):
    g = G1; slot = c % 3; tag = f'g1dma{c}'
    it = []
    it.append([(f's_add_u32 s3, {g.sROT}, {c}', None), ('s_and_b32 s3, s3, 7', None)])
    it.append([(f's_lshl_b32 {g.sXC}, s3, 7', None), (f's_mul_i32 {g.sWC}, s3, {64*3584}', None)])
    it.append([(f's_add_u32 {g.sXC}, {g.sXC}, {g.sXO}', None), (f's_add_u32 {g.sWC}, {g.sWC}, {g.sWO}', None)])
    for i in range(4):
        grp = []
        if i == 0: grp.append((f's_add_u32 m0, s90, {slot*G1_XS}', None))
        grp.append((f'buffer_load_dwordx4 v{g.XD+i}, {SRD_Q}, {g.sXC} offen offset:{1024*i} lds', tag))
        it.append(grp)
    for u in range(7):
        grp = []
        if u % 4 == 0: grp.append((f's_add_u32 m0, {g.sM}, {slot*G1_WS + 1024*u}', None))
        grp.append((f'buffer_load_dwordx4 v{g.WD+u}, {SRD_W}, {g.sWC} offen offset:{1024*(u%4)} lds', tag))
        it.append(grp)
    return it

def g1_reads(k):
    g = G1; c, ks = k >> 2, k & 3; slot = c % 3; buf = (k & 1)*32
    r = [f'ds_read_b128 a[{buf+28}:{buf+31}], v{g.XR+ks} offset:{slot*G1_XS}']
    for t in range(7):
        for m in range(2):
            off = (16*ks + 4*m)*224 + 32*t + (G1_WS if slot == 1 else 0)
            r.append(f'ds_read_b64_tr_b16 a[{buf+4*t+2*m}:{buf+4*t+2*m+1}], v{g.WR + (1 if slot == 2 else 0)} offset:{off}')
    return r

def g1_mfma(k, t):
    g = G1; buf = (k & 1)*32; A = g.ACC + 16*t
    return f'v_mfma_f32_32x32x16_bf16 v[{A}:{A+15}], a[{buf+4*t}:{buf+4*t+3}], a[{buf+28}:{buf+31}], ' + ('0' if k == 0 else f'v[{A}:{A+15}]')

def g1_main(a, sc=''):
    g = G1
    for c in range(3):
        for grp in g1_dma_items(c):
            for txt, tag in grp: a(txt, tag)
    a.wait_vm('g1dma0')
    a('s_barrier')
    for r in g1_reads(0): a(r)
    pend = []
    for k in range(32):
        c, ks = k >> 2, k & 3
        reads = g1_reads(k+1) if k < 31 else []
        gaps = [[] for _ in range(7)]
        first = 0
        if ks == 3 and k < 31:
            gaps[0] = ['BAR']; first = 1
            if c + 3 < 8: pend = g1_dma_items(c + 3)
        for i, r in enumerate(reads): gaps[first + i//3].append((r, None))
        free = [gp for gp in range(7) if gp >= first + 5] if reads else list(range(7))
        nper = 2 if len(free) >= 2 else 3
        for gp in free:
            for _ in range(nper):
                if pend: gaps[gp] += pend.pop(0)
        for t in range(7):
            a(g1_mfma(k, t))
            for it in gaps[t]:
                if it == 'BAR':
                    a.wait_vm(f'g1dma{c+1}')
                    a('s_waitcnt lgkmcnt(0)')
                    a('s_barrier')
                else: a(it[0], it[1])
    assert not pend
    T = g.T
    a(f'''s_lshl_b32 s3, {g.sRB}, 2
          s_add_u32 s3, s3, {sW}
          s_mul_i32 s3, s3, 112
          s_mul_i32 s54, {g.sFS}, 7
          s_add_u32 s3, s3, s54
          s_lshl_b32 s3, s3, 10
          s_add_u32 s3, s3, {WS_H}
          s_add_u32 s54, s3, 4096
          v_lshlrev_b32 v{T}, 4, v0''')
    for t in range(7):
        A = g.ACC + 16*t
        for j in range(8): a(f'v_max_f32 v{A+j}, 0, v{A+j}')
        for j in range(0, 8, 2): a(f'v_pk_mul_f32 v[{A+j}:{A+j+1}], v[{A+j}:{A+j+1}], v[{A+8+j}:{A+9+j}]')
        for j in range(4): a(f'v_cvt_pk_bf16_f32 v{A+8+j}, v{A+2*j}, v{A+2*j+1}')
        a(f'buffer_store_dwordx4 v[{A+8}:{A+11}], v{T}, {SRD_WS}, {"s3" if t < 4 else "s54"} offen offset:{1024*(t%4)} {sc}', tag='hst')

CV_U = 4608
CV_KS = 4160
CV_K = 4*CV_KS
class CV:
    ACC = 16
    T = 48
    UB = 0
    AF = 128
    NA = 8

def conv(a, lds, sc=''):
    cv = CV; T = cv.T
    UL = lds; KL = lds + 2*CV_U; RL = KL + 2*CV_K
    sCH, sP, sC, sD, sU, sK = 's54', 's55', 's84', 's85', 's86', 's87'
    a(f'''s_lshr_b32 {sCH}, {sW}, 1
          s_and_b32 {sP}, {sW}, 1
          s_lshl_b32 {sC}, {sXCD}, 6
          s_lshl_b32 s3, {sJ}, 1
          s_add_u32 {sC}, {sC}, s3
          s_lshl_b32 s88, {sC}, 1
          s_add_u32 {sC}, {sC}, {sCH}
          s_load_dword {sD}, s[{sDP[0]}:{sDP[1]}], s88
          s_mul_i32 {sU}, {sCH}, {CV_U}
          s_add_u32 {sU}, {sU}, {UL}
          s_mul_i32 {sK}, {sCH}, {CV_K}
          s_add_u32 {sK}, {sK}, {KL}
          s_lshl_b32 s89, {sC}, 12
          s_lshl_b32 s3, {sP}, 11
          s_add_u32 s90, s89, s3
          v_lshlrev_b32 v{T}, 4, v0''')
    a(f'''s_add_u32 s91, s90, {WS_KVT}
          s_add_u32 s3, s3, {sU}
          s_add_u32 m0, s3, 512
          buffer_load_dwordx4 v{T}, {SRD_WS}, s91 offen {sc} lds
          buffer_load_dwordx4 v{T}, {SRD_WS}, s91 offen offset:1024 {sc} lds''', tag='udma')
    KA = T + 4
    a(f'''s_lshl_b32 s3, {sP}, 10
          s_add_u32 s89, s89, s3''')
    for r in range(2):
        a(f'''buffer_load_dwordx4 v[{KA+8*r}:{KA+8*r+3}], v{T}, {SRD_SK}, s89 offen offset:{2048*r}
              buffer_load_dwordx4 v[{KA+8*r+4}:{KA+8*r+7}], v{T}, {SRD_SK}, s89 offen offset:{2048*r+16}''')
    Z = T + 20
    a(f'''v_mov_b32 v{Z}, 0
          v_mov_b32 v{Z+1}, 0
          v_mov_b32 v{Z+2}, 0
          v_mov_b32 v{Z+3}, 0
          v_add_u32 v{T+1}, {sU}, v{T}
          v_subrev_u32 v{T+2}, 32, v0
          v_lshrrev_b32 v{T+3}, 1, v{T+2}
          v_mul_u32_u24 v{T+3}, {CV_KS}, v{T+3}
          v_and_b32 v{T+2}, 1, v0
          v_lshl_add_u32 v{T+3}, v{T+2}, 4, v{T+3}
          v_add_u32 v{T+3}, {sK}, v{T+3}
          v_cmp_gt_u32 vcc, 32, v0
          v_cndmask_b32 v{T+1}, v{T+3}, v{T+1}, vcc
          s_mov_b32 exec_hi, 0xff
          s_cmp_lg_u32 {sP}, 0''')
    L = a.newlabel('L_cvz')
    a(f'''s_cbranch_scc1 {L}
          ds_write_b128 v{T+1}, v[{Z}:{Z+3}]''')
    a.label(L)
    a('s_mov_b64 exec, -1')
    a(f'''s_lshl_b32 s3, {sP}, 10
          s_add_u32 s3, s3, {sK}
          v_add_u32 v{T+1}, s3, v{T}''')
    C1, C2, C3 = T + 24, T + 28, T + 32
    for r in range(2):
        A = KA + 8*r
        for i in range(4): a(f'v_alignbit_b32 v{C1+i}, v{A+i+1}, v{A+i}, 16')
        for i in range(4): a(f'v_mov_b32 v{C2+i}, v{A+i+1}')
        for i in range(3): a(f'v_mov_b32 v{C3+i}, v{C1+i+1}')
        a(f'v_alignbit_b32 v{C3+3}, v{A+5}, v{A+4}, 16')
        off = 32 + 2048*r
        a(f'''ds_write_b128 v{T+1}, v[{A}:{A+3}] offset:{off}
              ds_write_b128 v{T+1}, v[{C1}:{C1+3}] offset:{off + CV_KS}
              ds_write_b128 v{T+1}, v[{C2}:{C2+3}] offset:{off + 2*CV_KS}
              ds_write_b128 v{T+1}, v[{C3}:{C3+3}] offset:{off + 3*CV_KS}''')
        if r == 0:
            L = a.newlabel('L_cvh')
            a(f'''v_lshlrev_b32 v{Z}, 16, v{A}
                  s_cmp_lg_u32 {sP}, 0
                  s_cbranch_scc1 {L}
                  s_mov_b64 exec, 1
                  ds_write_b32 v{T+1}, v{Z} offset:{CV_KS + 28}
                  ds_write_b32 v{T+1}, v{A} offset:{2*CV_KS + 28}
                  ds_write_b32 v{T+1}, v{Z} offset:{3*CV_KS + 24}
                  ds_write_b32 v{T+1}, v{C1} offset:{3*CV_KS + 28}
                  s_mov_b64 exec, -1''')
            a.label(L)
    vA, vU, vDt = T + 1, T + 2, T + 3
    a(f'''v_and_b32 v{Z}, 15, v0
          v_lshrrev_b32 v{Z+1}, 4, v0
          v_add_u32 v{Z+2}, 1, v{Z}
          v_and_b32 v{Z+3}, 3, v{Z+2}
          v_mul_u32_u24 v{vA}, {CV_KS}, v{Z+3}
          v_and_b32 v{Z+2}, 28, v{Z+2}
          v_lshlrev_b32 v{Z+3}, 3, v{Z+1}
          v_sub_u32 v{Z+2}, v{Z+2}, v{Z+3}
          v_add_u32 v{Z+2}, 24, v{Z+2}
          v_lshl_add_u32 v{vA}, v{Z+2}, 1, v{vA}
          s_lshl_b32 s3, {sP}, 6
          s_add_u32 s88, s3, {sK}
          v_add_u32 v{vA}, s88, v{vA}
          v_lshl_add_u32 v{vU}, v{Z}, 1, v{Z+1}
          v_lshlrev_b32 v{vU}, 4, v{vU}
          s_sub_u32 s88, {sU}, s3
          s_add_u32 s88, s88, {30*16 - 384}
          v_add_u32 v{vU}, s88, v{vU}
          v_lshrrev_b32 v{Z+2}, 1, v{Z+1}
          v_lshl_add_u32 v{Z+2}, v{Z}, 1, v{Z+2}
          v_lshlrev_b32 v{vDt}, 4, v{Z+2}
          v_and_b32 v{Z+2}, 1, v{Z+1}
          v_lshlrev_b32 v{Z+2}, 3, v{Z+2}
          v_sub_u32 v{vDt}, v{vDt}, v{Z+2}
          s_lshl_b32 s3, {sP}, 11
          s_add_u32 s88, s3, {sU}
          s_add_u32 s88, s88, {512 + 8}
          v_add_u32 v{vDt}, s88, v{vDt}''')
    a.wait_vm('udma')
    a('s_waitcnt lgkmcnt(0)')
    a(f'''s_lshr_b32 s3, {sD}, 16
          s_cmp_eq_u32 {sCH}, 0
          s_cselect_b32 {sD}, {sD}, s3
          s_lshl_b32 {sD}, {sD}, 16
          s_barrier''')
    def rdA(e):
        b = cv.AF + 4*(e % cv.NA)
        return [f'ds_read_b64 a[{b}:{b+1}], v{vA} offset:{128*e}', f'ds_read_b64 a[{b+2}:{b+3}], v{vA} offset:{128*e+8}']
    def rdU(mu):
        b = cv.UB + 4*(mu + 3)
        return f'ds_read_b128 a[{b}:{b+3}], v{vU} offset:{128*(mu+3)}'
    LA = 3
    for e in range(LA):
        if e == 1:
            for n in range(8): a(rdU(4*n))
        for r in rdA(e): a(r)
    for e in range(32):
        fill = []
        if e + LA < 32: fill += rdA(e + LA)
        if e < 3: fill = [rdU(4*n - (e+1)) for n in range(8)] + fill
        ns = list(range(e >> 2, 8))
        per = -(-len(fill) // len(ns))
        for n in ns:
            b = cv.AF + 4*(e % cv.NA); u = cv.UB + 4*(4*n - e + 3); A = cv.ACC + 4*n
            a(f'v_mfma_f32_16x16x32_bf16 v[{A}:{A+3}], a[{b}:{b+3}], a[{u}:{u+3}], ' + ('0' if e == 0 else f'v[{A}:{A+3}]'))
            for _ in range(per):
                if fill: a(fill.pop(0))
    X = T + 4
    U2 = T + 20
    a(f'''s_lshl_b32 s3, {sW}, 12
          s_add_u32 s88, s3, {RL}
          v_add_u32 v{Z+8}, s88, v{T}
          s_xor_b32 s88, s3, 4096
          s_add_u32 s88, s88, {RL}
          v_add_u32 v{Z+9}, s88, v{T}''')
    for i in range(4): a(f'ds_read_b64 v[{U2+2*i}:{U2+2*i+1}], v{vDt} offset:{512*i}')
    L1 = a.newlabel('L_cvp1'); L2 = a.newlabel('L_cvp2')
    a(f's_nop 7\ns_cmp_lg_u32 {sP}, 0\ns_cbranch_scc1 {L1}')
    for i in range(4): a(f'ds_write_b128 v{Z+8}, v[{cv.ACC+16+4*i}:{cv.ACC+19+4*i}] offset:{1024*i}')
    a(f's_branch {L2}')
    a.label(L1)
    for i in range(4): a(f'ds_write_b128 v{Z+8}, v[{cv.ACC+4*i}:{cv.ACC+3+4*i}] offset:{1024*i}')
    for i in range(16): a(f'v_mov_b32 v{cv.ACC+i}, v{cv.ACC+16+i}')
    a.label(L2)
    a('s_waitcnt lgkmcnt(0)\ns_barrier')
    for i in range(4): a(f'ds_read_b128 v[{X+4*i}:{X+4*i+3}], v{Z+9} offset:{1024*i}')
    A = cv.ACC; E = cv.ACC + 16
    for i in range(4):
        a(f'''v_and_b32 v{E+4*i}, 0xffff0000, v{U2+2*i+1}
              v_lshlrev_b32 v{E+4*i+1}, 16, v{U2+2*i+1}
              v_and_b32 v{E+4*i+2}, 0xffff0000, v{U2+2*i}
              v_lshlrev_b32 v{E+4*i+3}, 16, v{U2+2*i}''')
    for i in range(16): a(f'v_fmac_f32 v{A+i}, {sD}, v{E+i}')
    for i in range(0, 16, 2): a(f'v_pk_add_f32 v[{A+i}:{A+i+1}], v[{A+i}:{A+i+1}], v[{X+i}:{X+i+1}]')
    for i in range(8): a(f'v_cvt_pk_bf16_f32 v{E+i}, v{A+2*i}, v{A+2*i+1}')
    a(f'''v_bfe_u32 v{X}, v0, 4, 1
          v_bfe_u32 v{X+1}, v0, 2, 2
          v_lshl_add_u32 v{X}, v{X}, 2, v{X+1}
          v_lshlrev_b32 v{X}, 7, v{X}
          v_lshrrev_b32 v{X+1}, 5, v0
          v_and_b32 v{X+2}, 3, v0
          v_lshl_add_u32 v{X+1}, v{X+1}, 2, v{X+2}
          v_lshl_add_u32 v{X}, v{X+1}, 4, v{X}
          s_add_u32 s90, s90, {WS_Y}''')
    for i in range(2):
        a(f'''v_permlane16_swap_b32 v{E+4*i}, v{E+4*i+2}
              v_permlane16_swap_b32 v{E+4*i+1}, v{E+4*i+3}''')
        a(f'buffer_store_dwordx4 v[{E+4*i}:{E+4*i+3}], v{X}, {SRD_WS}, s90 offen offset:{1024*i} {sc}', tag='yst')

class G2:
    ACC = 16
    HB = 80
    NH = 12
    T = 176
    AF = 0
    NA = 4
    NW = 12

def g2(a, lds, sc=''):
    q = G2; T = q.T
    WL = lds
    QL = lds + 4*q.NW*2048
    YL = QL + 8192
    RL = lds
    sSB, sDB, sWD, sH0, sH1, sM = 's54', 's55', 's84', 's85', 's86', 's87'
    vWD, vL16, vA0, vA1 = T, T+1, T+2, T+3
    a(f'''s_lshl_b32 {sSB}, {sXCD}, 2
          s_and_b32 s3, {sJ}, 3
          s_add_u32 {sSB}, {sSB}, s3
          s_lshr_b32 {sDB}, {sJ}, 2
          s_mul_i32 {sWD}, {sW}, {448*1024}
          s_lshl_b32 s3, {sDB}, 7
          s_add_u32 {sWD}, {sWD}, s3
          s_lshl_b32 s3, {sSB}, 1
          s_and_b32 s88, {sW}, 1
          s_add_u32 s89, s3, s88
          s_xor_b32 s88, s88, 1
          s_add_u32 s88, s3, s88
          s_mul_i32 {sH0}, s89, {112*1024}
          s_mul_i32 {sH1}, s88, {112*1024}
          s_mul_i32 s3, {sW}, {28*1024}
          s_add_u32 s3, s3, {WS_H}
          s_add_u32 {sH0}, {sH0}, s3
          s_add_u32 {sH1}, {sH1}, s3
          s_mul_i32 {sM}, {sW}, {q.NW*2048}
          s_add_u32 {sM}, {sM}, {WL}
          v_lshlrev_b32 v{vL16}, 4, v0
          v_lshrrev_b32 v{vWD}, 3, v0
          v_lshlrev_b32 v{vWD}, 10, v{vWD}
          v_bfe_u32 v{T+4}, v0, 4, 1
          v_lshlrev_b32 v{T+4}, 2, v{T+4}
          v_and_b32 v{T+5}, 7, v0
          v_xor_b32 v{T+4}, v{T+4}, v{T+5}
          v_lshl_add_u32 v{vWD}, v{T+4}, 4, v{vWD}
          v_add_u32 v{T+6}, {8192-1024}, v{vWD}''')
    vWD1 = T + 6
    a(f'''v_lshrrev_b32 v{T+4}, 5, v0
          v_bfe_u32 v{T+5}, v0, 2, 2
          v_lshl_add_u32 v{T+4}, v{T+4}, 2, v{T+5}
          v_lshlrev_b32 v{vA0}, 7, v{T+4}
          v_bfe_u32 v{T+4}, v0, 3, 1
          s_lshr_b32 s3, {sW}, 1
          v_xor_b32 v{T+4}, s3, v{T+4}
          v_lshl_add_u32 v{vA0}, v{T+4}, 6, v{vA0}
          v_bfe_u32 v{T+4}, v0, 4, 1
          v_lshl_add_u32 v{vA0}, v{T+4}, 5, v{vA0}
          v_and_b32 v{T+4}, 3, v0
          v_lshl_add_u32 v{vA0}, v{T+4}, 3, v{vA0}
          v_add_u32 v{vA0}, {sM}, v{vA0}
          v_xor_b32 v{vA1}, 64, v{vA0}''')
    def dmaW(ft):
        sl = ft % q.NW
        return [(f's_add_u32 m0, {sM}, {sl*2048}', None), (f's_add_u32 s3, {sWD}, {ft*16384}', None),
                (f'buffer_load_dwordx4 v{vWD}, {SRD_WD}, s3 offen lds', f'wd{ft}'),
                (f'buffer_load_dwordx4 v{vWD1}, {SRD_WD}, s3 offen offset:1024 lds', f'wd{ft}')]
    def ldH(ft):
        b = q.HB + 8*(ft % q.NH)
        r = []
        if ft % 4 == 0 and ft: r += [(f's_add_u32 {sH0}, {sH0}, 4096', None), (f's_add_u32 {sH1}, {sH1}, 4096', None)]
        r += [(f'buffer_load_dwordx4 v[{b}:{b+3}], v{vL16}, {SRD_WS}, {sH0} offen offset:{1024*(ft%4)} {sc}', None),
              (f'buffer_load_dwordx4 v[{b+4}:{b+7}], v{vL16}, {SRD_WS}, {sH1} offen offset:{1024*(ft%4)} {sc}', None)]
        return r
    def rdA(ft):
        sl = ft % q.NW; b = q.AF + 8*(ft % q.NA)
        return [(f'ds_read_b64_tr_b16 a[{b+4*al+2*m}:{b+4*al+2*m+1}], v{vA0+al} offset:{sl*2048 + 1024*m}', None)
                for al in range(2) for m in range(2)]
    vQ = T + 7; vY = T + 8
    a(f'''v_lshrrev_b32 v{T+4}, 3, v0
          v_and_b32 v{T+5}, 7, v0
          v_lshlrev_b32 v{vQ}, 10, v{T+4}
          v_lshl_add_u32 v{vQ}, v{T+5}, 4, v{vQ}
          v_lshlrev_b32 v{vY}, 12, v{T+4}
          v_lshl_add_u32 v{vY}, v{T+5}, 4, v{vY}
          v_add_u32 v{T+9}, {8192-1024}, v{vQ}
          v_add_u32 v{T+10}, {32768-1024}, v{vY}
          s_lshl_b32 s88, {sSB}, 16
          s_lshl_b32 s3, {sW}, 14
          s_add_u32 s88, s88, s3
          s_lshl_b32 s3, {sDB}, 7
          s_add_u32 s88, s88, s3
          s_lshl_b32 s89, {sDB}, 18
          s_lshl_b32 s3, {sW}, 16
          s_add_u32 s89, s89, s3
          s_lshl_b32 s3, {sSB}, 7
          s_add_u32 s89, s89, s3
          s_add_u32 s89, s89, {WS_Y}
          s_lshl_b32 s90, {sW}, 11''')
    PRE = q.NW - 1
    for ft in range(PRE):
        for t, g in dmaW(ft): a(t, g)
        for t, g in ldH(ft): a(t, g)
    a(f'''s_add_u32 m0, s90, {QL}
          buffer_load_dwordx4 v{vQ}, {SRD_Q}, s88 offen lds
          buffer_load_dwordx4 v{T+9}, {SRD_Q}, s88 offen offset:1024 lds
          s_add_u32 m0, s90, {YL}
          buffer_load_dwordx4 v{vY}, {SRD_WS}, s89 offen {sc} lds
          buffer_load_dwordx4 v{T+10}, {SRD_WS}, s89 offen offset:1024 {sc} lds''', tag='qy')
    vG = T + 12
    a(f'''v_and_b32 v{T+4}, 31, v0
          v_lshlrev_b32 v{T+4}, 3, v{T+4}
          s_lshl_b32 s3, {sSB}, 1
          s_and_b32 s91, {sW}, 1
          s_add_u32 s3, s3, s91
          s_lshl_b32 s3, s3, 8
          s_add_u32 s3, s3, {WS_G}
          buffer_load_dwordx2 v[{vG}:{vG+1}], v{T+4}, {SRD_WS}, s3 offen {sc}''')
    for ft in range(2):
        a.wait_vm(f'wd{ft}')
        for t, g in rdA(ft): a(t, g)
    for ft in range(28):
        fill = []
        if ft + 2 < 28: fill += [('WAIT', ft + 2)] + rdA(ft + 2)
        late = []
        if ft + PRE < 28: late = dmaW(ft + PRE) + ldH(ft + PRE)
        b = q.AF + 8*(ft % q.NA); hb = q.HB + 8*(ft % q.NH)
        for sg in range(4):
            al, be = sg >> 1, sg & 1; A = q.ACC + 16*sg
            a(f'v_mfma_f32_32x32x16_bf16 v[{A}:{A+15}], a[{b+4*al}:{b+4*al+3}], v[{hb+4*be}:{hb+4*be+3}], ' + ('0' if ft == 0 else f'v[{A}:{A+15}]'))
            if sg == 0:
                for t, g in fill:
                    if t == 'WAIT': a.wait_vm(f'wd{g}')
                    else: a(t, g)
            if sg == 3:
                for t, g in late: a(t, g)
    a.wait_vm('qy')
    a('s_barrier')
    QV = q.HB; YV = q.HB + 8; AT = q.HB + 16; X = q.HB + 32
    a(f'''v_and_b32 v{T+4}, 31, v0
          v_lshlrev_b32 v{T+4}, 7, v{T+4}
          v_lshrrev_b32 v{T+5}, 5, v0
          v_lshl_add_u32 v{T+4}, v{T+5}, 3, v{T+4}
          s_and_b32 s3, {sW}, 1
          s_lshl_b32 s3, s3, 12
          s_lshr_b32 s88, {sW}, 1
          s_lshl_b32 s89, s88, 6
          s_add_u32 s3, s3, s89
          s_add_u32 s3, s3, {QL}
          v_add_u32 v{T+4}, s3, v{T+4}''')
    for m in range(4): a(f'ds_read_b64 v[{QV+2*m}:{QV+2*m+1}], v{T+4} offset:{16*m}')
    a(f'''v_lshrrev_b32 v{T+5}, 5, v0
          v_bfe_u32 v{T+6}, v0, 2, 2
          v_lshl_add_u32 v{T+5}, v{T+5}, 2, v{T+6}
          v_lshlrev_b32 v{T+5}, 7, v{T+5}
          v_bfe_u32 v{T+6}, v0, 1, 1
          v_lshl_add_u32 v{T+5}, v{T+6}, 6, v{T+5}
          v_bfe_u32 v{T+6}, v0, 4, 1
          v_lshl_add_u32 v{T+5}, v{T+6}, 4, v{T+5}
          v_and_b32 v{T+6}, 1, v0
          v_lshl_add_u32 v{T+5}, v{T+6}, 3, v{T+5}
          s_and_b32 s3, {sW}, 1
          s_lshl_b32 s3, s3, 5
          s_lshl_b32 s89, s88, 12
          s_add_u32 s3, s3, s89
          s_add_u32 s3, s3, {YL}
          v_add_u32 v{T+5}, s3, v{T+5}''')
    for m in range(4): a(f'ds_read_b64_tr_b16 v[{YV+2*m}:{YV+2*m+1}], v{T+5} offset:{1024*m}')
    for sg in range(1, 4):
        a(f'''s_xor_b32 s3, {sW}, {sg}
              s_lshl_b32 s3, s3, 12
              s_add_u32 s3, s3, {RL + (sg-1)*16384}
              v_add_u32 v{T+6}, s3, v{vL16}''')
        for m in range(4):
            A = q.ACC + 16*sg + 4*m
            a(f'ds_write_b128 v{T+6}, v[{A}:{A+3}] offset:{1024*m}')
    for i in range(8):
        a(f'''v_lshlrev_b32 v{AT+2*i}, 16, v{QV+i}
              v_and_b32 v{AT+2*i+1}, 0xffff0000, v{QV+i}
              v_lshlrev_b32 v{QV+i}, 16, v{YV+i}
              v_and_b32 v{YV+i}, 0xffff0000, v{YV+i}
              v_mul_f32 v{AT+2*i}, v{AT+2*i}, v{QV+i}
              v_mul_f32 v{AT+2*i+1}, v{AT+2*i+1}, v{YV+i}
              v_mul_f32 v{AT+2*i}, v{AT+2*i}, v{vG}
              v_mul_f32 v{AT+2*i+1}, v{AT+2*i+1}, v{vG}''')
    a(f'''s_lshl_b32 s3, {sW}, 12
          s_add_u32 s3, s3, {RL}
          v_add_u32 v{T+6}, s3, v{vL16}
          s_waitcnt lgkmcnt(0)
          s_barrier''')
    for sg in range(1, 4):
        for m in range(4):
            b = X + 16*(sg-1) + 4*m
            a(f'ds_read_b128 v[{b}:{b+3}], v{T+6} offset:{(sg-1)*16384 + 1024*m}')
    A = q.ACC
    for sg in range(1, 4):
        for i in range(0, 16, 2):
            b = X + 16*(sg-1) + i
            a(f'v_pk_add_f32 v[{A+i}:{A+i+1}], v[{A+i}:{A+i+1}], v[{b}:{b+1}]')
    for i in range(16): a(f'v_fmac_f32 v{AT+i}, v{A+i}, v{vG+1}')
    for i in range(8): a(f'v_cvt_pk_bf16_f32 v{A+i}, v{AT+2*i}, v{AT+2*i+1}')
    OL = QL
    a(f'''s_mul_i32 s3, {sW}, 2560
          s_add_u32 s3, s3, {OL}
          v_and_b32 v{T+4}, 31, v0
          v_mul_u32_u24 v{T+4}, 80, v{T+4}
          v_lshrrev_b32 v{T+5}, 5, v0
          v_lshl_add_u32 v{T+4}, v{T+5}, 3, v{T+4}
          v_add_u32 v{T+4}, s3, v{T+4}''')
    for m in range(4): a(f'ds_write_b64 v{T+4}, v[{A+2*m}:{A+2*m+1}] offset:{16*m}')
    a(f'''v_lshrrev_b32 v{T+5}, 2, v0
          v_mul_u32_u24 v{T+6}, 80, v{T+5}
          v_and_b32 v{T+7}, 3, v0
          v_lshl_add_u32 v{T+6}, v{T+7}, 4, v{T+6}
          v_add_u32 v{T+6}, s3, v{T+6}
          ds_read_b128 v[{X}:{X+3}], v{T+6}
          ds_read_b128 v[{X+4}:{X+7}], v{T+6} offset:{16*80}
          v_lshlrev_b32 v{T+5}, 10, v{T+5}
          v_lshl_add_u32 v{T+5}, v{T+7}, 4, v{T+5}
          s_lshl_b32 s3, {sSB}, 1
          s_add_u32 s3, s3, s91
          s_lshl_b32 s3, s3, 15
          s_lshl_b32 s89, {sDB}, 7
          s_add_u32 s3, s3, s89
          s_lshl_b32 s89, s88, 6
          s_add_u32 s3, s3, s89
          s_add_u32 s89, s3, 16384
          buffer_store_dwordx4 v[{X}:{X+3}], v{T+5}, {SRD_OUT}, s3 offen
          buffer_store_dwordx4 v[{X+4}:{X+7}], v{T+5}, {SRD_OUT}, s89 offen''')

def kernel_text(kname, body, vgpr, accum):
    return f'''.text
.globl {kname}
.p2align 8
.type {kname},@function
{kname}:
{body}
'''
def descriptor(kname, vgpr, accum):
    return f'''.amdhsa_kernel {kname}
  .amdhsa_next_free_vgpr {vgpr}
  .amdhsa_next_free_sgpr 102
  .amdhsa_accum_offset {accum}
  .amdhsa_group_segment_fixed_size 0
  .amdhsa_kernarg_size 112
  .amdhsa_user_sgpr_count 2
  .amdhsa_user_sgpr_kernarg_segment_ptr 1
  .amdhsa_system_sgpr_workgroup_id_x 1
  .amdhsa_float_denorm_mode_32 3
.end_amdhsa_kernel
'''

def build_multi(opts=None):
    opts = opts or {}
    ks = []
    def mk(kname, fn, lds):
        a = Asm(); a.kname = kname
        prologue(a); fn(a)
        a.label(f'L_end_{kname}'); a('s_endpgm')
        ks.append((kname, finalize(a), lds))
    def k_p0(a):
        a('s_lshl_b32 s54, s2, 3')
        gate_rows(a, 's54', 80, 84)
        p0(a, 0, 8, 84)
    def k_g1(a):
        g1_setup(a, rot=opts.get('rot', True)); g1_main(a)
    mk('p0_kernel', k_p0, 27648)
    mk('g1_kernel', k_g1, G1_END)
    mk('conv_kernel', lambda a: conv(a, 0), 2*CV_U + 2*CV_K + 16384)
    mk('g2_kernel', lambda a: g2(a, 0), 4*G2.NW*2048 + 16384)
    out = ['; generated by work/gen.py (hand-designed schedule, python emitted)']
    for kname, _, lds in ks: out.append(f'; @launch kernel={kname} grid=(256,1,1) block=(256,1,1) lds={lds}')
    out.append('.amdgcn_target "amdgcn-amd-amdhsa--gfx950"')
    for kname, body, _ in ks: out.append(kernel_text(kname, body, 512, 256))
    out.append('.section .rodata,"a"')
    for kname, _, _ in ks: out.append('.p2align 6\n' + descriptor(kname, 512, 256))
    return '\n'.join(out)

if __name__ == '__main__':
    txt = build_multi()
    open(sys.argv[1] if len(sys.argv) > 1 else 'multi.s', 'w').write(txt)
    print(len(txt), 'bytes')
```

```python
import sys
from asmlib import *

NAME = 'gated_mix__ssm_conv_h3__glu_gated_reglu__prompt'
S, D, F = 2048, 512, 1792
WS_KVT = 0
WS_Y = 2 << 20
WS_H = 4 << 20
WS_G = 12 << 20
WS_FLAG = 13 << 20
WS_SIZE = 16 << 20

sW, sXCD, sJ = 's4', 's5', 's6'
SRD_Q, SRD_K, SRD_V, SRD_SH, SRD_SK, SRD_W, SRD_WD, SRD_GW, SRD_OUT, SRD_WS, SRD_DBG = \
    ['s[%d:%d]' % (8 + 4 * i, 11 + 4 * i) for i in range(11)]
sDP = (52, 53)

def prologue(a, nwg=256):
    a(f'''s_cmp_ge_u32 s2, {nwg}
          s_cbranch_scc1 L_end_{a.kname}
          s_load_dwordx16 s[56:71], s[0:1], 0
          s_load_dwordx8 s[72:79], s[0:1], 64
          s_load_dwordx4 s[80:83], s[0:1], 96
          v_lshrrev_b32 v1, 6, v0
          s_and_b32 {sXCD}, s2, 7
          v_readfirstlane_b32 {sW}, v1
          s_lshr_b32 {sJ}, s2, 3
          v_and_b32 v0, 63, v0
          s_waitcnt lgkmcnt(0)''')
    def srd(base, lo, size):
        a(f'''s_mov_b32 s{base}, s{lo}
              s_mov_b32 s{base+1}, s{lo+1}
              s_mov_b32 s{base+2}, {size}
              s_mov_b32 s{base+3}, 0x20000''')
    srd(8, 56, S*D*2); srd(12, 58, S*D*2); srd(16, 60, S*D*2); srd(20, 62, D*8); srd(24, 64, D*S*2)
    a(f'''s_cmp_lt_u32 {sW}, 2
          s_cselect_b32 s28, s70, s72
          s_cselect_b32 s29, s71, s73
          s_mov_b32 s30, {D*F*2}
          s_mov_b32 s31, 0x20000''')
    srd(32, 74, F*D*2); srd(36, 76, D*2); srd(40, 78, S*D*2); srd(44, 82, WS_SIZE); srd(48, 80, 256)
    a('s_mov_b32 s52, s66\ns_mov_b32 s53, s67')

def gate_rows(a, srow, vt, st, sc=''):
    q0, q1, gw, ad, z0, z1 = vt, vt+4, vt+8, vt+12, vt+13, vt+14
    a(f'''s_lshl_b32 s{st}, {sW}, 1
          s_add_u32 s{st}, s{st}, {srow}
          s_lshl_b32 s{st+1}, s{st}, 10
          v_lshlrev_b32 v{ad}, 4, v0
          buffer_load_dwordx4 v[{gw}:{gw+3}], v{ad}, {SRD_GW}, 0 offen
          buffer_load_dwordx4 v[{q0}:{q0+3}], v{ad}, {SRD_Q}, s{st+1} offen
          buffer_load_dwordx4 v[{q1}:{q1+3}], v{ad}, {SRD_Q}, s{st+1} offen offset:1024''')
    for i in range(4):
        a(f'v_dot2_f32_bf16 v{z0}, v{q0+i}, v{gw+i}, ' + ('0' if i == 0 else f'v{z0}'))
        a(f'v_dot2_f32_bf16 v{z1}, v{q1+i}, v{gw+i}, ' + ('0' if i == 0 else f'v{z1}'))
    for r in (8, 4, 2, 1):
        a(f'v_add_f32_dpp v{z0}, v{z0}, v{z0} row_ror:{r} row_mask:0xf bank_mask:0xf')
        a(f'v_add_f32_dpp v{z1}, v{z1}, v{z1} row_ror:{r} row_mask:0xf bank_mask:0xf')
    a(f'''v_permlane16_swap_b32 v{z0}, v{z1}
          v_add_f32 v{z0}, v{z0}, v{z1}
          v_mov_b32 v{z1}, v{z0}
          v_permlane32_swap_b32 v{z0}, v{z1}
          v_add_f32 v{z0}, v{z0}, v{z1}
          v_cvt_pk_bf16_f32 v{z0}, v{z0}, v{z0}
          v_and_b32 v{z0}, 0xffff0000, v{z0}
          v_mul_f32 v{z0}, 0xbfb8aa3b, v{z0}
          v_exp_f32 v{z0}, v{z0}
          v_add_f32 v{z0}, 1.0, v{z0}
          v_rcp_f32 v{z0}, v{z0}
          v_cvt_pk_bf16_f32 v{z0}, v{z0}, v{z0}
          v_and_b32 v{q0}, 0xffff0000, v{z0}
          v_sub_f32 v{z0}, 1.0, v{q0}
          v_cvt_pk_bf16_f32 v{z0}, v{z0}, v{z0}
          v_and_b32 v{q0+1}, 0xffff0000, v{z0}
          v_lshrrev_b32 v{ad}, 1, v0
          s_lshl_b32 s{st}, s{st}, 3
          s_add_u32 s{st}, s{st}, {WS_G}
          s_mov_b64 exec, 0x10001
          buffer_store_dwordx2 v[{q0}:{q0+1}], v{ad}, {SRD_WS}, s{st} offen {sc}
          s_mov_b64 exec, -1''', tag='gst')

def p0(a, lds, vt, st, sc=''):
    KB, VB, TB = lds, lds + 9*1024, lds + 17*1024
    ko, kh, sh, tmp = vt, vt+1, vt+2, vt+4
    P = vt + 6
    Vv = vt + 16
    Q = vt + 24
    R = vt + 34
    O = vt + 50
    a(f'''v_lshrrev_b32 v{tmp}, 3, v0
          v_lshlrev_b32 v{tmp}, 10, v{tmp}
          v_and_b32 v{ko}, 7, v0
          v_lshl_add_u32 v{ko}, v{ko}, 4, v{tmp}
          s_lshl_b32 s{st}, {sJ}, 16
          s_lshl_b32 s{st+1}, {sXCD}, 7
          s_add_u32 s{st}, s{st}, s{st+1}
          v_add_u32 v{ko}, s{st}, v{ko}
          v_subrev_u32 v{kh}, 8192, v{ko}
          s_cmp_lg_u32 {sW}, 0''')
    L = a.newlabel('L_nohalo')
    a(f'''s_cbranch_scc1 {L}
          s_mov_b32 m0, {KB}
          buffer_load_dwordx4 v{kh}, {SRD_K}, 0 offen lds''', tag='p0dma')
    a.label(L)
    a(f'''s_lshl_b32 s{st}, {sW}, 13
          s_add_u32 s{st+1}, s{st}, 32768
          s_lshl_b32 s{st+2}, {sW}, 10
          v_and_b32 v{tmp}, 15, v0
          v_lshlrev_b32 v{tmp}, 3, v{tmp}
          s_lshl_b32 s{st+3}, {sXCD}, 9
          s_lshl_b32 s{st+4}, {sW}, 7
          s_add_u32 s{st+3}, s{st+3}, s{st+4}''')
    for srd, base in ((SRD_K, KB + 1024), (SRD_V, VB)):
        for jj in range(2):
            a(f'''s_add_u32 m0, s{st+2}, {base + jj*4096}
                  buffer_load_dwordx4 v{ko}, {srd}, s{st+jj} offen lds''', tag='p0dma')
    a(f'''buffer_load_dwordx2 v[{sh}:{sh+1}], v{tmp}, {SRD_SH}, s{st+3} offen''')
    a(f'''v_lshrrev_b32 v{tmp}, 4, v0
          v_lshlrev_b32 v{tmp}, 11, v{tmp}
          v_bfe_u32 v{tmp+1}, v0, 2, 2
          v_lshl_add_u32 v{tmp}, v{tmp+1}, 7, v{tmp}
          v_and_b32 v{tmp+1}, 3, v0
          v_lshl_add_u32 v{tmp}, v{tmp+1}, 3, v{tmp}
          s_lshl_b32 s{st}, {sW}, 5
          s_add_u32 s{st}, s{st}, {lds}
          v_add_u32 v{tmp}, s{st}, v{tmp}''')
    a.wait_vm('p0dma')
    a('s_barrier')
    for i in range(5):
        a(f'ds_read_b64_tr_b16 v[{P+2*i}:{P+2*i+1}], v{tmp} offset:{512 + 512*i}')
    for i in range(4):
        a(f'ds_read_b64_tr_b16 v[{Vv+2*i}:{Vv+2*i+1}], v{tmp} offset:{9*1024 + 512*i}')
    a(f'''v_alignbit_b32 v{sh}, v{sh}, v{sh}, 16
          v_alignbit_b32 v{sh+1}, v{sh+1}, v{sh+1}, 16''')
    for i in range(1, 10):
        a(f'v_alignbit_b32 v{Q+i-1}, v{P+i}, v{P+i-1}, 16')
    for i in range(8):
        a(f'v_dot2_f32_bf16 v{R+2*i}, v{Q+i+1}, v{sh}, 0')
        a(f'v_dot2_f32_bf16 v{R+2*i+1}, v{P+i+2}, v{sh}, 0')
    for i in range(8):
        a(f'v_dot2_f32_bf16 v{R+2*i}, v{Q+i}, v{sh+1}, v{R+2*i}')
        a(f'v_dot2_f32_bf16 v{R+2*i+1}, v{P+i+1}, v{sh+1}, v{R+2*i+1}')
    for i in range(8):
        a(f'''v_lshlrev_b32 v{Q}, 16, v{Vv+i}
              v_and_b32 v{Vv+i}, 0xffff0000, v{Vv+i}
              v_mul_f32 v{R+2*i}, v{R+2*i}, v{Q}
              v_mul_f32 v{R+2*i+1}, v{R+2*i+1}, v{Vv+i}''')
    for j in range(2):
        for d in range(4):
            a(f'v_cvt_pk_bf16_f32 v{O+4*j+d}, v{R+8*j+7-2*d}, v{R+8*j+6-2*d}')
    a(f'''v_and_b32 v{ko}, 15, v0
          v_mul_u32_u24 v{ko}, 144, v{ko}
          v_lshrrev_b32 v{kh}, 4, v0
          v_lshl_add_u32 v{ko}, v{kh}, 5, v{ko}
          s_mul_i32 s{st}, {sW}, 2304
          s_add_u32 s{st}, s{st}, {TB}
          v_add_u32 v{ko}, s{st}, v{ko}
          ds_write_b128 v{ko}, v[{O}:{O+3}]
          ds_write_b128 v{ko}, v[{O+4}:{O+7}] offset:16
          v_lshrrev_b32 v{kh}, 3, v0
          v_mul_u32_u24 v{tmp}, 144, v{kh}
          v_and_b32 v{tmp+1}, 7, v0
          v_lshl_add_u32 v{tmp}, v{tmp+1}, 4, v{tmp}
          v_add_u32 v{tmp}, s{st}, v{tmp}
          ds_read_b128 v[{R}:{R+3}], v{tmp}
          ds_read_b128 v[{R+4}:{R+7}], v{tmp} offset:{8*144}
          v_lshlrev_b32 v{kh}, 12, v{kh}
          v_lshl_add_u32 v{kh}, v{tmp+1}, 4, v{kh}
          s_lshl_b32 s{st}, {sXCD}, 18
          s_lshl_b32 s{st+1}, {sW}, 16
          s_add_u32 s{st}, s{st}, s{st+1}
          s_lshl_b32 s{st+1}, {sJ}, 7
          s_add_u32 s{st}, s{st}, s{st+1}
          s_add_u32 s{st}, s{st}, {WS_KVT}
          s_add_u32 s{st+1}, s{st}, 32768''')
    a(f'''buffer_store_dwordx4 v[{R}:{R+3}], v{kh}, {SRD_WS}, s{st} offen {sc}
          buffer_store_dwordx4 v[{R+4}:{R+7}], v{kh}, {SRD_WS}, s{st+1} offen {sc}''', tag='kvst')

G1_XS = 16384
G1_WB = 49152
G1_WS = 28928
G1_UP = 14464
G1_END = G1_WB + 3*G1_WS

class G1:
    ACC = 16
    XR = 128
    WR = 132
    XD = 134
    WD = 138
    T = 146
    sRB, sFS, sROT, sXO, sWO, sM = 's54', 's55', 's84', 's85', 's86', 's87'
    sXC, sWC = 's88', 's89'

def g1_setup(a, rot=True):
    g = G1; T = g.T
    a(f'''s_and_b32 {g.sRB}, {sXCD}, 1
          s_lshl_b32 {g.sRB}, {g.sRB}, 3
          s_and_b32 s3, {sJ}, 7
          s_add_u32 {g.sRB}, {g.sRB}, s3
          s_lshr_b32 {g.sFS}, {sXCD}, 1
          s_lshl_b32 {g.sFS}, {g.sFS}, 2
          s_lshr_b32 s3, {sJ}, 3
          s_add_u32 {g.sFS}, {g.sFS}, s3''')
    if rot:
        a(f's_lshl_b32 {g.sROT}, {g.sFS}, 1\ns_add_u32 {g.sROT}, {g.sROT}, {g.sRB}')
    else:
        a(f's_mov_b32 {g.sROT}, 0')
    a(f'''s_lshl_b32 {g.sXO}, {g.sRB}, 17
          s_lshl_b32 s3, {sW}, 15
          s_add_u32 {g.sXO}, {g.sXO}, s3
          s_mul_i32 {g.sWO}, {g.sFS}, 224
          s_and_b32 s3, {sW}, 1
          s_mul_i32 s3, s3, {32*3584}
          s_add_u32 {g.sWO}, {g.sWO}, s3''')
    a(f'''v_lshrrev_b32 v{T}, 3, v0
          v_lshlrev_b32 v{T}, 10, v{T}
          v_lshrrev_b32 v{T+1}, 4, v0
          v_and_b32 v{T+2}, 7, v0
          v_xor_b32 v{T+1}, v{T+1}, v{T+2}
          v_lshl_add_u32 v{g.XD}, v{T+1}, 4, v{T}
          v_xor_b32 v{g.XD+1}, 64, v{g.XD}
          v_add_u32 v{g.XD+1}, {8192-1024}, v{g.XD+1}
          v_add_u32 v{g.XD+2}, {2*(8192-1024)}, v{g.XD}
          v_add_u32 v{g.XD+3}, {2*(8192-1024)}, v{g.XD+1}
          s_mov_b32 s3, {(2**32 + 13)//14}''')
    for u in range(7):
        a(f'''v_add_u32 v{T}, {64*u}, v0
              v_mul_hi_u32 v{T+1}, v{T}, s3
              v_mul_u32_u24 v{T+1}, {3584-224}, v{T+1}
              v_lshl_add_u32 v{g.WD+u}, v{T}, 4, v{T+1}''')
        if u % 4: a(f'v_subrev_u32 v{g.WD+u}, {1024*(u%4)}, v{g.WD+u}')
    a(f'''v_and_b32 v{T}, 31, v0
          v_lshrrev_b32 v{T+1}, 5, v0
          v_bfe_u32 v{T+2}, v0, 1, 3
          v_xor_b32 v{T+1}, v{T+1}, v{T+2}
          v_lshlrev_b32 v{T}, 7, v{T}
          v_lshl_add_u32 v{T}, v{T+1}, 4, v{T}
          s_lshl_b32 s3, {sW}, 12
          v_add_u32 v{g.XR}, s3, v{T}
          v_xor_b32 v{g.XR+1}, 32, v{g.XR}
          v_xor_b32 v{g.XR+2}, 64, v{g.XR}
          v_xor_b32 v{g.XR+3}, 96, v{g.XR}''')
    a(f'''v_bfe_u32 v{T}, v0, 4, 1
          v_mul_u32_u24 v{T}, {G1_UP}, v{T}
          v_lshrrev_b32 v{T+1}, 5, v0
          v_lshlrev_b32 v{T+1}, 3, v{T+1}
          v_bfe_u32 v{T+2}, v0, 2, 2
          v_add_u32 v{T+1}, v{T+1}, v{T+2}
          v_mul_u32_u24 v{T+1}, 224, v{T+1}
          v_and_b32 v{T+2}, 3, v0
          v_lshl_add_u32 v{T+1}, v{T+2}, 3, v{T+1}
          v_add_u32 v{T}, v{T}, v{T+1}
          v_add_u32 v{g.WR}, {G1_WB}, v{T}
          v_add_u32 v{g.WR+1}, {G1_WB + 2*G1_WS}, v{T}''')
    a(f'''s_lshr_b32 s3, {sW}, 1
          s_mul_i32 {g.sM}, s3, {G1_UP}
          s_and_b32 s3, {sW}, 1
          s_mul_i32 s3, s3, 7168
          s_add_u32 {g.sM}, {g.sM}, s3
          s_add_u32 {g.sM}, {g.sM}, {G1_WB}
          s_lshl_b32 s90, {sW}, 12''')

def g1_dma_items(c):
    g = G1; slot = c % 3; tag = f'g1dma{c}'
    it = []
    it.append([(f's_add_u32 s3, {g.sROT}, {c}', None), ('s_and_b32 s3, s3, 7', None)])
    it.append([(f's_lshl_b32 {g.sXC}, s3, 7', None), (f's_mul_i32 {g.sWC}, s3, {64*3584}', None)])
    it.append([(f's_add_u32 {g.sXC}, {g.sXC}, {g.sXO}', None), (f's_add_u32 {g.sWC}, {g.sWC}, {g.sWO}', None)])
    for i in range(4):
        grp = []
        if i == 0: grp.append((f's_add_u32 m0, s90, {slot*G1_XS}', None))
        grp.append((f'buffer_load_dwordx4 v{g.XD+i}, {SRD_Q}, {g.sXC} offen offset:{1024*i} lds', tag))
        it.append(grp)
    for u in range(7):
        grp = []
        if u % 4 == 0: grp.append((f's_add_u32 m0, {g.sM}, {slot*G1_WS + 1024*u}', None))
        grp.append((f'buffer_load_dwordx4 v{g.WD+u}, {SRD_W}, {g.sWC} offen offset:{1024*(u%4)} lds', tag))
        it.append(grp)
    return it

def g1_reads(k):
    g = G1; c, ks = k >> 2, k & 3; slot = c % 3; buf = (k & 1)*32
    r = [f'ds_read_b128 a[{buf+28}:{buf+31}], v{g.XR+ks} offset:{slot*G1_XS}']
    for t in range(7):
        for m in range(2):
            off = (16*ks + 4*m)*224 + 32*t + (G1_WS if slot == 1 else 0)
            r.append(f'ds_read_b64_tr_b16 a[{buf+4*t+2*m}:{buf+4*t+2*m+1}], v{g.WR + (1 if slot == 2 else 0)} offset:{off}')
    return r

def g1_mfma(k, t):
    g = G1; buf = (k & 1)*32; A = g.ACC + 16*t
    return f'v_mfma_f32_32x32x16_bf16 v[{A}:{A+15}], a[{buf+4*t}:{buf+4*t+3}], a[{buf+28}:{buf+31}], ' + ('0' if k == 0 else f'v[{A}:{A+15}]')

def g1_main(a, sc=''):
    g = G1
    for c in range(3):
        for grp in g1_dma_items(c):
            for txt, tag in grp: a(txt, tag)
    stamp(a, 8)
    a.wait_vm('g1dma0')
    a('s_barrier')
    stamp(a, 9)
    for r in g1_reads(0): a(r)
    pend = []
    for k in range(32):
        c, ks = k >> 2, k & 3
        reads = g1_reads(k+1) if k < 31 else []
        gaps = [[] for _ in range(7)]
        first = 0
        if ks == 3 and k < 31:
            gaps[0] = ['BAR']; first = 1
            if c + 3 < 8 and not a.opts.get('nodma'): pend = g1_dma_items(c + 3)
        if a.opts.get('noreads'): reads = []
        for i, r in enumerate(reads): gaps[first + i//3].append((r, None))
        free = [gp for gp in range(7) if gp >= first + 5] if reads else list(range(7))
        nper = 2 if len(free) >= 2 else 3
        for gp in free:
            for _ in range(nper):
                if pend: gaps[gp] += pend.pop(0)
        for t in range(7):
            a(g1_mfma(k, t))
            for it in gaps[t]:
                if it == 'BAR' and a.opts.get('nobar'): pass
                elif it == 'BAR':
                    a.wait_vm(f'g1dma{c+1}')
                    a('s_waitcnt lgkmcnt(0)')
                    a('s_barrier')
                    if c in (0, 2, 4, 6): stamp(a, 10 + c//2)
                else: a(it[0], it[1])
    assert not pend
    stamp(a, 14)
    T = g.T
    a(f'''s_lshl_b32 s3, {g.sRB}, 2
          s_add_u32 s3, s3, {sW}
          s_mul_i32 s3, s3, 112
          s_mul_i32 s54, {g.sFS}, 7
          s_add_u32 s3, s3, s54
          s_lshl_b32 s3, s3, 10
          s_add_u32 s3, s3, {WS_H}
          s_add_u32 s54, s3, 4096
          v_lshlrev_b32 v{T}, 4, v0''')
    for t in range(7):
        A = g.ACC + 16*t
        for j in range(8): a(f'v_max_f32 v{A+j}, 0, v{A+j}')
        for j in range(0, 8, 2): a(f'v_pk_mul_f32 v[{A+j}:{A+j+1}], v[{A+j}:{A+j+1}], v[{A+8+j}:{A+9+j}]')
        for j in range(4): a(f'v_cvt_pk_bf16_f32 v{A+8+j}, v{A+2*j}, v{A+2*j+1}')
        a(f'buffer_store_dwordx4 v[{A+8}:{A+11}], v{T}, {SRD_WS}, {"s3" if t < 4 else "s54"} offen offset:{1024*(t%4)} {sc}', tag='hst')

CV_U = 4608
CV_KS = 4160
CV_K = 4*CV_KS
class CV:
    ACC = 16
    T = 48
    UB = 0
    AF = 128
    NA = 8

def conv(a, lds, sc=''):
    cv = CV; T = cv.T
    UL = lds; KL = lds + 2*CV_U; RL = KL + 2*CV_K
    sCH, sP, sC, sD, sU, sK = 's54', 's55', 's84', 's85', 's86', 's87'
    a(f'''s_lshr_b32 {sCH}, {sW}, 1
          s_and_b32 {sP}, {sW}, 1
          s_lshl_b32 {sC}, {sXCD}, 6
          s_lshl_b32 s3, {sJ}, 1
          s_add_u32 {sC}, {sC}, s3
          s_lshl_b32 s88, {sC}, 1
          s_add_u32 {sC}, {sC}, {sCH}
          s_load_dword {sD}, s[{sDP[0]}:{sDP[1]}], s88
          s_mul_i32 {sU}, {sCH}, {CV_U}
          s_add_u32 {sU}, {sU}, {UL}
          s_mul_i32 {sK}, {sCH}, {CV_K}
          s_add_u32 {sK}, {sK}, {KL}
          s_lshl_b32 s89, {sC}, 12
          s_lshl_b32 s3, {sP}, 11
          s_add_u32 s90, s89, s3
          v_lshlrev_b32 v{T}, 4, v0''')
    a(f'''s_add_u32 s91, s90, {WS_KVT}
          s_add_u32 s3, s3, {sU}
          s_add_u32 m0, s3, 512
          buffer_load_dwordx4 v{T}, {SRD_WS}, s91 offen {sc} lds
          buffer_load_dwordx4 v{T}, {SRD_WS}, s91 offen offset:1024 {sc} lds''', tag='udma')
    KA = T + 4
    a(f'''s_lshl_b32 s3, {sP}, 10
          s_add_u32 s89, s89, s3''')
    for r in range(2):
        a(f'''buffer_load_dwordx4 v[{KA+8*r}:{KA+8*r+3}], v{T}, {SRD_SK}, s89 offen offset:{2048*r}
              buffer_load_dwordx4 v[{KA+8*r+4}:{KA+8*r+7}], v{T}, {SRD_SK}, s89 offen offset:{2048*r+16}''')
    Z = T + 20
    a(f'''v_mov_b32 v{Z}, 0
          v_mov_b32 v{Z+1}, 0
          v_mov_b32 v{Z+2}, 0
          v_mov_b32 v{Z+3}, 0
          v_add_u32 v{T+1}, {sU}, v{T}
          v_subrev_u32 v{T+2}, 32, v0
          v_lshrrev_b32 v{T+3}, 1, v{T+2}
          v_mul_u32_u24 v{T+3}, {CV_KS}, v{T+3}
          v_and_b32 v{T+2}, 1, v0
          v_lshl_add_u32 v{T+3}, v{T+2}, 4, v{T+3}
          v_add_u32 v{T+3}, {sK}, v{T+3}
          v_cmp_gt_u32 vcc, 32, v0
          v_cndmask_b32 v{T+1}, v{T+3}, v{T+1}, vcc
          s_mov_b32 exec_hi, 0xff
          s_cmp_lg_u32 {sP}, 0''')
    L = a.newlabel('L_cvz')
    a(f'''s_cbranch_scc1 {L}
          ds_write_b128 v{T+1}, v[{Z}:{Z+3}]''')
    a.label(L)
    a('s_mov_b64 exec, -1')
    a(f'''s_lshl_b32 s3, {sP}, 10
          s_add_u32 s3, s3, {sK}
          v_add_u32 v{T+1}, s3, v{T}''')
    C1, C2, C3 = T + 24, T + 28, T + 32
    for r in range(2):
        A = KA + 8*r
        for i in range(4): a(f'v_alignbit_b32 v{C1+i}, v{A+i+1}, v{A+i}, 16')
        for i in range(4): a(f'v_mov_b32 v{C2+i}, v{A+i+1}')
        for i in range(3): a(f'v_mov_b32 v{C3+i}, v{C1+i+1}')
        a(f'v_alignbit_b32 v{C3+3}, v{A+5}, v{A+4}, 16')
        off = 32 + 2048*r
        a(f'''ds_write_b128 v{T+1}, v[{A}:{A+3}] offset:{off}
              ds_write_b128 v{T+1}, v[{C1}:{C1+3}] offset:{off + CV_KS}
              ds_write_b128 v{T+1}, v[{C2}:{C2+3}] offset:{off + 2*CV_KS}
              ds_write_b128 v{T+1}, v[{C3}:{C3+3}] offset:{off + 3*CV_KS}''')
        if r == 0:
            L = a.newlabel('L_cvh')
            a(f'''v_lshlrev_b32 v{Z}, 16, v{A}
                  s_cmp_lg_u32 {sP}, 0
                  s_cbranch_scc1 {L}
                  s_mov_b64 exec, 1
                  ds_write_b32 v{T+1}, v{Z} offset:{CV_KS + 28}
                  ds_write_b32 v{T+1}, v{A} offset:{2*CV_KS + 28}
                  ds_write_b32 v{T+1}, v{Z} offset:{3*CV_KS + 24}
                  ds_write_b32 v{T+1}, v{C1} offset:{3*CV_KS + 28}
                  s_mov_b64 exec, -1''')
            a.label(L)
    vA, vU, vDt = T + 1, T + 2, T + 3
    a(f'''v_and_b32 v{Z}, 15, v0
          v_lshrrev_b32 v{Z+1}, 4, v0
          v_add_u32 v{Z+2}, 1, v{Z}
          v_and_b32 v{Z+3}, 3, v{Z+2}
          v_mul_u32_u24 v{vA}, {CV_KS}, v{Z+3}
          v_and_b32 v{Z+2}, 28, v{Z+2}
          v_lshlrev_b32 v{Z+3}, 3, v{Z+1}
          v_sub_u32 v{Z+2}, v{Z+2}, v{Z+3}
          v_add_u32 v{Z+2}, 24, v{Z+2}
          v_lshl_add_u32 v{vA}, v{Z+2}, 1, v{vA}
          s_lshl_b32 s3, {sP}, 6
          s_add_u32 s88, s3, {sK}
          v_add_u32 v{vA}, s88, v{vA}
          v_lshl_add_u32 v{vU}, v{Z}, 1, v{Z+1}
          v_lshlrev_b32 v{vU}, 4, v{vU}
          s_sub_u32 s88, {sU}, s3
          s_add_u32 s88, s88, {30*16 - 384}
          v_add_u32 v{vU}, s88, v{vU}
          v_lshrrev_b32 v{Z+2}, 1, v{Z+1}
          v_lshl_add_u32 v{Z+2}, v{Z}, 1, v{Z+2}
          v_lshlrev_b32 v{vDt}, 4, v{Z+2}
          v_and_b32 v{Z+2}, 1, v{Z+1}
          v_lshlrev_b32 v{Z+2}, 3, v{Z+2}
          v_sub_u32 v{vDt}, v{vDt}, v{Z+2}
          s_lshl_b32 s3, {sP}, 11
          s_add_u32 s88, s3, {sU}
          s_add_u32 s88, s88, {512 + 8}
          v_add_u32 v{vDt}, s88, v{vDt}''')
    a.wait_vm('udma')
    a('s_waitcnt lgkmcnt(0)')
    a(f'''s_lshr_b32 s3, {sD}, 16
          s_cmp_eq_u32 {sCH}, 0
          s_cselect_b32 {sD}, {sD}, s3
          s_lshl_b32 {sD}, {sD}, 16
          s_barrier''')
    def rdA(e):
        b = cv.AF + 4*(e % cv.NA)
        return [f'ds_read_b64 a[{b}:{b+1}], v{vA} offset:{128*e}', f'ds_read_b64 a[{b+2}:{b+3}], v{vA} offset:{128*e+8}']
    def rdU(mu):
        b = cv.UB + 4*(mu + 3)
        return f'ds_read_b128 a[{b}:{b+3}], v{vU} offset:{128*(mu+3)}'
    LA = 3
    for e in range(LA):
        if e == 1:
            for n in range(8): a(rdU(4*n))
        for r in rdA(e): a(r)
    for e in range(32):
        fill = []
        if e + LA < 32: fill += rdA(e + LA)
        if e < 3: fill = [rdU(4*n - (e+1)) for n in range(8)] + fill
        ns = list(range(e >> 2, 8))
        per = -(-len(fill) // len(ns))
        for n in ns:
            b = cv.AF + 4*(e % cv.NA); u = cv.UB + 4*(4*n - e + 3); A = cv.ACC + 4*n
            a(f'v_mfma_f32_16x16x32_bf16 v[{A}:{A+3}], a[{b}:{b+3}], a[{u}:{u+3}], ' + ('0' if e == 0 else f'v[{A}:{A+3}]'))
            for _ in range(per):
                if fill: a(fill.pop(0))
    X = T + 4
    U2 = T + 20
    a(f'''s_lshl_b32 s3, {sW}, 12
          s_add_u32 s88, s3, {RL}
          v_add_u32 v{Z+8}, s88, v{T}
          s_xor_b32 s88, s3, 4096
          s_add_u32 s88, s88, {RL}
          v_add_u32 v{Z+9}, s88, v{T}''')
    for i in range(4): a(f'ds_read_b64 v[{U2+2*i}:{U2+2*i+1}], v{vDt} offset:{512*i}')
    L1 = a.newlabel('L_cvp1'); L2 = a.newlabel('L_cvp2')
    a(f's_nop 7\ns_cmp_lg_u32 {sP}, 0\ns_cbranch_scc1 {L1}')
    for i in range(4): a(f'ds_write_b128 v{Z+8}, v[{cv.ACC+16+4*i}:{cv.ACC+19+4*i}] offset:{1024*i}')
    a(f's_branch {L2}')
    a.label(L1)
    for i in range(4): a(f'ds_write_b128 v{Z+8}, v[{cv.ACC+4*i}:{cv.ACC+3+4*i}] offset:{1024*i}')
    for i in range(16): a(f'v_mov_b32 v{cv.ACC+i}, v{cv.ACC+16+i}')
    a.label(L2)
    a('s_waitcnt lgkmcnt(0)\ns_barrier')
    for i in range(4): a(f'ds_read_b128 v[{X+4*i}:{X+4*i+3}], v{Z+9} offset:{1024*i}')
    A = cv.ACC; E = cv.ACC + 16
    for i in range(4):
        a(f'''v_and_b32 v{E+4*i}, 0xffff0000, v{U2+2*i+1}
              v_lshlrev_b32 v{E+4*i+1}, 16, v{U2+2*i+1}
              v_and_b32 v{E+4*i+2}, 0xffff0000, v{U2+2*i}
              v_lshlrev_b32 v{E+4*i+3}, 16, v{U2+2*i}''')
    for i in range(16): a(f'v_fmac_f32 v{A+i}, {sD}, v{E+i}')
    for i in range(0, 16, 2): a(f'v_pk_add_f32 v[{A+i}:{A+i+1}], v[{A+i}:{A+i+1}], v[{X+i}:{X+i+1}]')
    for i in range(8): a(f'v_cvt_pk_bf16_f32 v{E+i}, v{A+2*i}, v{A+2*i+1}')
    a(f'''v_bfe_u32 v{X}, v0, 4, 1
          v_bfe_u32 v{X+1}, v0, 2, 2
          v_lshl_add_u32 v{X}, v{X}, 2, v{X+1}
          v_lshlrev_b32 v{X}, 7, v{X}
          v_lshrrev_b32 v{X+1}, 5, v0
          v_and_b32 v{X+2}, 3, v0
          v_lshl_add_u32 v{X+1}, v{X+1}, 2, v{X+2}
          v_lshl_add_u32 v{X}, v{X+1}, 4, v{X}
          s_add_u32 s90, s90, {WS_Y}''')
    for i in range(2):
        a(f'''v_permlane16_swap_b32 v{E+4*i}, v{E+4*i+2}
              v_permlane16_swap_b32 v{E+4*i+1}, v{E+4*i+3}''')
        a(f'buffer_store_dwordx4 v[{E+4*i}:{E+4*i+3}], v{X}, {SRD_WS}, s90 offen offset:{1024*i} {sc}', tag='yst')

class G2:
    ACC = 16
    HB = 80
    NH = 12
    T = 176
    AF = 0
    NA = 4
    NW = 12

def g2(a, lds, sc=''):
    q = G2; T = q.T
    WL = lds
    QL = lds + 4*q.NW*2048
    YL = QL + 8192
    RL = lds
    sSB, sDB, sWD, sH0, sH1, sM = 's54', 's55', 's84', 's85', 's86', 's87'
    vWD, vL16, vA0, vA1 = T, T+1, T+2, T+3
    a(f'''s_lshl_b32 {sSB}, {sXCD}, 2
          s_and_b32 s3, {sJ}, 3
          s_add_u32 {sSB}, {sSB}, s3
          s_lshr_b32 {sDB}, {sJ}, 2
          s_mul_i32 {sWD}, {sW}, {448*1024}
          s_lshl_b32 s3, {sDB}, 7
          s_add_u32 {sWD}, {sWD}, s3
          s_lshl_b32 s3, {sSB}, 1
          s_and_b32 s88, {sW}, 1
          s_add_u32 s89, s3, s88
          s_xor_b32 s88, s88, 1
          s_add_u32 s88, s3, s88
          s_mul_i32 {sH0}, s89, {112*1024}
          s_mul_i32 {sH1}, s88, {112*1024}
          s_mul_i32 s3, {sW}, {28*1024}
          s_add_u32 s3, s3, {WS_H}
          s_add_u32 {sH0}, {sH0}, s3
          s_add_u32 {sH1}, {sH1}, s3
          s_mul_i32 {sM}, {sW}, {q.NW*2048}
          s_add_u32 {sM}, {sM}, {WL}
          v_lshlrev_b32 v{vL16}, 4, v0
          v_lshrrev_b32 v{vWD}, 3, v0
          v_lshlrev_b32 v{vWD}, 10, v{vWD}
          v_bfe_u32 v{T+4}, v0, 4, 1
          v_lshlrev_b32 v{T+4}, 2, v{T+4}
          v_and_b32 v{T+5}, 7, v0
          v_xor_b32 v{T+4}, v{T+4}, v{T+5}
          v_lshl_add_u32 v{vWD}, v{T+4}, 4, v{vWD}
          v_add_u32 v{T+6}, {8192-1024}, v{vWD}''')
    vWD1 = T + 6
    a(f'''v_lshrrev_b32 v{T+4}, 5, v0
          v_bfe_u32 v{T+5}, v0, 2, 2
          v_lshl_add_u32 v{T+4}, v{T+4}, 2, v{T+5}
          v_lshlrev_b32 v{vA0}, 7, v{T+4}
          v_bfe_u32 v{T+4}, v0, 3, 1
          s_lshr_b32 s3, {sW}, 1
          v_xor_b32 v{T+4}, s3, v{T+4}
          v_lshl_add_u32 v{vA0}, v{T+4}, 6, v{vA0}
          v_bfe_u32 v{T+4}, v0, 4, 1
          v_lshl_add_u32 v{vA0}, v{T+4}, 5, v{vA0}
          v_and_b32 v{T+4}, 3, v0
          v_lshl_add_u32 v{vA0}, v{T+4}, 3, v{vA0}
          v_add_u32 v{vA0}, {sM}, v{vA0}
          v_xor_b32 v{vA1}, 64, v{vA0}''')
    def dmaW(ft):
        sl = ft % q.NW
        return [(f's_add_u32 m0, {sM}, {sl*2048}', None), (f's_add_u32 s3, {sWD}, {ft*16384}', None),
                (f'buffer_load_dwordx4 v{vWD}, {SRD_WD}, s3 offen lds', f'wd{ft}'),
                (f'buffer_load_dwordx4 v{vWD1}, {SRD_WD}, s3 offen offset:1024 lds', f'wd{ft}')]
    def ldH(ft):
        b = q.HB + 8*(ft % q.NH)
        r = []
        if ft % 4 == 0 and ft: r += [(f's_add_u32 {sH0}, {sH0}, 4096', None), (f's_add_u32 {sH1}, {sH1}, 4096', None)]
        r += [(f'buffer_load_dwordx4 v[{b}:{b+3}], v{vL16}, {SRD_WS}, {sH0} offen offset:{1024*(ft%4)} {sc}', None),
              (f'buffer_load_dwordx4 v[{b+4}:{b+7}], v{vL16}, {SRD_WS}, {sH1} offen offset:{1024*(ft%4)} {sc}', None)]
        return r
    def rdA(ft):
        sl = ft % q.NW; b = q.AF + 8*(ft % q.NA)
        return [(f'ds_read_b64_tr_b16 a[{b+4*al+2*m}:{b+4*al+2*m+1}], v{vA0+al} offset:{sl*2048 + 1024*m}', None)
                for al in range(2) for m in range(2)]
    vQ = T + 7; vY = T + 8
    a(f'''v_lshrrev_b32 v{T+4}, 3, v0
          v_and_b32 v{T+5}, 7, v0
          v_lshlrev_b32 v{vQ}, 10, v{T+4}
          v_lshl_add_u32 v{vQ}, v{T+5}, 4, v{vQ}
          v_lshlrev_b32 v{vY}, 12, v{T+4}
          v_lshl_add_u32 v{vY}, v{T+5}, 4, v{vY}
          v_add_u32 v{T+9}, {8192-1024}, v{vQ}
          v_add_u32 v{T+10}, {32768-1024}, v{vY}
          s_lshl_b32 s88, {sSB}, 16
          s_lshl_b32 s3, {sW}, 14
          s_add_u32 s88, s88, s3
          s_lshl_b32 s3, {sDB}, 7
          s_add_u32 s88, s88, s3
          s_lshl_b32 s89, {sDB}, 18
          s_lshl_b32 s3, {sW}, 16
          s_add_u32 s89, s89, s3
          s_lshl_b32 s3, {sSB}, 7
          s_add_u32 s89, s89, s3
          s_add_u32 s89, s89, {WS_Y}
          s_lshl_b32 s90, {sW}, 11''')
    PRE = q.NW - 1
    for ft in range(PRE):
        for t, g in dmaW(ft): a(t, g)
        for t, g in ldH(ft): a(t, g)
    a(f'''s_add_u32 m0, s90, {QL}
          buffer_load_dwordx4 v{vQ}, {SRD_Q}, s88 offen lds
          buffer_load_dwordx4 v{T+9}, {SRD_Q}, s88 offen offset:1024 lds
          s_add_u32 m0, s90, {YL}
          buffer_load_dwordx4 v{vY}, {SRD_WS}, s89 offen {sc} lds
          buffer_load_dwordx4 v{T+10}, {SRD_WS}, s89 offen offset:1024 {sc} lds''', tag='qy')
    vG = T + 12
    a(f'''v_and_b32 v{T+4}, 31, v0
          v_lshlrev_b32 v{T+4}, 3, v{T+4}
          s_lshl_b32 s3, {sSB}, 1
          s_and_b32 s91, {sW}, 1
          s_add_u32 s3, s3, s91
          s_lshl_b32 s3, s3, 8
          s_add_u32 s3, s3, {WS_G}
          buffer_load_dwordx2 v[{vG}:{vG+1}], v{T+4}, {SRD_WS}, s3 offen {sc}''')
    for ft in range(2):
        a.wait_vm(f'wd{ft}')
        for t, g in rdA(ft): a(t, g)
    for ft in range(28):
        fill = []
        if ft + 2 < 28: fill += [('WAIT', ft + 2)] + rdA(ft + 2)
        late = []
        if ft + PRE < 28: late = dmaW(ft + PRE) + ldH(ft + PRE)
        b = q.AF + 8*(ft % q.NA); hb = q.HB + 8*(ft % q.NH)
        for sg in range(4):
            al, be = sg >> 1, sg & 1; A = q.ACC + 16*sg
            a(f'v_mfma_f32_32x32x16_bf16 v[{A}:{A+15}], a[{b+4*al}:{b+4*al+3}], v[{hb+4*be}:{hb+4*be+3}], ' + ('0' if ft == 0 else f'v[{A}:{A+15}]'))
            if sg == 0:
                for t, g in fill:
                    if t == 'WAIT': a.wait_vm(f'wd{g}')
                    else: a(t, g)
            if sg == 3:
                for t, g in late: a(t, g)
    a.wait_vm('qy')
    a('s_barrier')
    QV = q.HB; YV = q.HB + 8; AT = q.HB + 16; X = q.HB + 32
    a(f'''v_and_b32 v{T+4}, 31, v0
          v_lshlrev_b32 v{T+4}, 7, v{T+4}
          v_lshrrev_b32 v{T+5}, 5, v0
          v_lshl_add_u32 v{T+4}, v{T+5}, 3, v{T+4}
          s_and_b32 s3, {sW}, 1
          s_lshl_b32 s3, s3, 12
          s_lshr_b32 s88, {sW}, 1
          s_lshl_b32 s89, s88, 6
          s_add_u32 s3, s3, s89
          s_add_u32 s3, s3, {QL}
          v_add_u32 v{T+4}, s3, v{T+4}''')
    for m in range(4): a(f'ds_read_b64 v[{QV+2*m}:{QV+2*m+1}], v{T+4} offset:{16*m}')
    a(f'''v_lshrrev_b32 v{T+5}, 5, v0
          v_bfe_u32 v{T+6}, v0, 2, 2
          v_lshl_add_u32 v{T+5}, v{T+5}, 2, v{T+6}
          v_lshlrev_b32 v{T+5}, 7, v{T+5}
          v_bfe_u32 v{T+6}, v0, 1, 1
          v_lshl_add_u32 v{T+5}, v{T+6}, 6, v{T+5}
          v_bfe_u32 v{T+6}, v0, 4, 1
          v_lshl_add_u32 v{T+5}, v{T+6}, 4, v{T+5}
          v_and_b32 v{T+6}, 1, v0
          v_lshl_add_u32 v{T+5}, v{T+6}, 3, v{T+5}
          s_and_b32 s3, {sW}, 1
          s_lshl_b32 s3, s3, 5
          s_lshl_b32 s89, s88, 12
          s_add_u32 s3, s3, s89
          s_add_u32 s3, s3, {YL}
          v_add_u32 v{T+5}, s3, v{T+5}''')
    for m in range(4): a(f'ds_read_b64_tr_b16 v[{YV+2*m}:{YV+2*m+1}], v{T+5} offset:{1024*m}')
    for sg in range(1, 4):
        a(f'''s_xor_b32 s3, {sW}, {sg}
              s_lshl_b32 s3, s3, 12
              s_add_u32 s3, s3, {RL + (sg-1)*16384}
              v_add_u32 v{T+6}, s3, v{vL16}''')
        for m in range(4):
            A = q.ACC + 16*sg + 4*m
            a(f'ds_write_b128 v{T+6}, v[{A}:{A+3}] offset:{1024*m}')
    for i in range(8):
        a(f'''v_lshlrev_b32 v{AT+2*i}, 16, v{QV+i}
              v_and_b32 v{AT+2*i+1}, 0xffff0000, v{QV+i}
              v_lshlrev_b32 v{QV+i}, 16, v{YV+i}
              v_and_b32 v{YV+i}, 0xffff0000, v{YV+i}
              v_mul_f32 v{AT+2*i}, v{AT+2*i}, v{QV+i}
              v_mul_f32 v{AT+2*i+1}, v{AT+2*i+1}, v{YV+i}
              v_mul_f32 v{AT+2*i}, v{AT+2*i}, v{vG}
              v_mul_f32 v{AT+2*i+1}, v{AT+2*i+1}, v{vG}''')
    a(f'''s_lshl_b32 s3, {sW}, 12
          s_add_u32 s3, s3, {RL}
          v_add_u32 v{T+6}, s3, v{vL16}
          s_waitcnt lgkmcnt(0)
          s_barrier''')
    for sg in range(1, 4):
        for m in range(4):
            b = X + 16*(sg-1) + 4*m
            a(f'ds_read_b128 v[{b}:{b+3}], v{T+6} offset:{(sg-1)*16384 + 1024*m}')
    A = q.ACC
    for sg in range(1, 4):
        for i in range(0, 16, 2):
            b = X + 16*(sg-1) + i
            a(f'v_pk_add_f32 v[{A+i}:{A+i+1}], v[{A+i}:{A+i+1}], v[{b}:{b+1}]')
    for i in range(16): a(f'v_fmac_f32 v{AT+i}, v{A+i}, v{vG+1}')
    for i in range(8): a(f'v_cvt_pk_bf16_f32 v{A+i}, v{AT+2*i}, v{AT+2*i+1}')
    OL = QL
    a(f'''s_mul_i32 s3, {sW}, 2560
          s_add_u32 s3, s3, {OL}
          v_and_b32 v{T+4}, 31, v0
          v_mul_u32_u24 v{T+4}, 80, v{T+4}
          v_lshrrev_b32 v{T+5}, 5, v0
          v_lshl_add_u32 v{T+4}, v{T+5}, 3, v{T+4}
          v_add_u32 v{T+4}, s3, v{T+4}''')
    for m in range(4): a(f'ds_write_b64 v{T+4}, v[{A+2*m}:{A+2*m+1}] offset:{16*m}')
    a(f'''v_lshrrev_b32 v{T+5}, 2, v0
          v_mul_u32_u24 v{T+6}, 80, v{T+5}
          v_and_b32 v{T+7}, 3, v0
          v_lshl_add_u32 v{T+6}, v{T+7}, 4, v{T+6}
          v_add_u32 v{T+6}, s3, v{T+6}
          ds_read_b128 v[{X}:{X+3}], v{T+6}
          ds_read_b128 v[{X+4}:{X+7}], v{T+6} offset:{16*80}
          v_lshlrev_b32 v{T+5}, 10, v{T+5}
          v_lshl_add_u32 v{T+5}, v{T+7}, 4, v{T+5}
          s_lshl_b32 s3, {sSB}, 1
          s_add_u32 s3, s3, s91
          s_lshl_b32 s3, s3, 15
          s_lshl_b32 s89, {sDB}, 7
          s_add_u32 s3, s3, s89
          s_lshl_b32 s89, s88, 6
          s_add_u32 s3, s3, s89
          s_add_u32 s89, s3, 16384
          buffer_store_dwordx4 v[{X}:{X+3}], v{T+5}, {SRD_OUT}, s3 offen
          buffer_store_dwordx4 v[{X+4}:{X+7}], v{T+5}, {SRD_OUT}, s89 offen''')

WS_STAMP = 14 << 20
NSTAMP = 16
def stamp(a, i):
    if not getattr(a, 'stamps', False): return
    a(f"""{'s_memtime' if getattr(a, 'cyc', 0) else 's_memrealtime'} s[92:93]
          s_waitcnt lgkmcnt(0)
          v_writelane_b32 v255, s92, {i}""")
    a.smask = getattr(a, 'smask', 0) | (1 << i)
def stamp_flush(a):
    if not getattr(a, 'stamps', False): return
    a(f"""s_lshl_b32 s92, s2, 2
          s_add_u32 s92, s92, {sW}
          s_lshl_b32 s92, s92, 6
          s_add_u32 s92, s92, {WS_STAMP}
          v_lshlrev_b32 v254, 2, v0
          s_mov_b64 exec, {a.smask}
          buffer_store_dword v255, v254, {SRD_WS}, s92 offen
          s_mov_b64 exec, -1""")

def kernel_text(kname, body, vgpr, accum):
    return f'''.text
.globl {kname}
.p2align 8
.type {kname},@function
{kname}:
{body}
'''
def descriptor(kname, vgpr, accum):
    return f'''.amdhsa_kernel {kname}
  .amdhsa_next_free_vgpr {vgpr}
  .amdhsa_next_free_sgpr 102
  .amdhsa_accum_offset {accum}
  .amdhsa_group_segment_fixed_size 0
  .amdhsa_kernarg_size 112
  .amdhsa_user_sgpr_count 2
  .amdhsa_user_sgpr_kernarg_segment_ptr 1
  .amdhsa_system_sgpr_workgroup_id_x 1
  .amdhsa_float_denorm_mode_32 3
.end_amdhsa_kernel
'''

def build_multi(opts=None):
    opts = opts or {}
    ks = []
    def mk(kname, fn, lds):
        a = Asm(); a.kname = kname; a.stamps = opts.get('stamps', False); a.cyc = opts.get('cyc', 0); a.opts = opts
        i = len(ks)
        prologue(a); stamp(a, 2*i); fn(a)
        if a.stamps: a.fence()
        stamp(a, 2*i + 1); stamp_flush(a)
        a.label(f'L_end_{kname}'); a('s_endpgm')
        ks.append((kname, finalize(a), lds))
    def k_p0(a):
        a('s_lshl_b32 s54, s2, 3')
        gate_rows(a, 's54', 80, 84)
        p0(a, 0, 8, 84)
    def k_g1(a):
        g1_setup(a, rot=opts.get('rot', True)); g1_main(a)
    mk('p0_kernel', k_p0, 27648)
    mk('g1_kernel', k_g1, G1_END)
    mk('conv_kernel', lambda a: conv(a, 0), 2*CV_U + 2*CV_K + 16384)
    mk('g2_kernel', lambda a: g2(a, 0), 4*G2.NW*2048 + 16384)
    if opts.get('empty'):
        ks.append(('nop_kernel', 's_endpgm', 0))
    out = ['; generated by work/gen.py (hand-designed schedule, python emitted)']
    order = list(ks)
    if opts.get('empty'): order = (ks[:-1] + [ks[-1]]*opts['empty']) if not opts.get('front') else ([ks[-1]]*opts['empty'] + ks[:-1])
    for kname, _, lds in order: out.append(f'; @launch kernel={kname} grid=(256,1,1) block=(256,1,1) lds={lds}')
    out.append('.amdgcn_target "amdgcn-amd-amdhsa--gfx950"')
    for kname, body, _ in ks: out.append(kernel_text(kname, body, 512, 256))
    out.append('.section .rodata,"a"')
    for kname, _, _ in ks: out.append('.p2align 6\n' + descriptor(kname, 512, 256))
    return '\n'.join(out)

if __name__ == '__main__':
    opts = dict(kv.split('=') for kv in sys.argv[2:])
    opts = {k: int(v) for k, v in opts.items()}
    txt = build_multi(opts)
    open(sys.argv[1] if len(sys.argv) > 1 else 'multi.s', 'w').write(txt)
    print(len(txt), 'bytes')
```

```python
import sys
from asmlib import *

NAME = 'gated_mix__ssm_conv_h3__glu_gated_reglu__prompt'
S, D, F = 2048, 512, 1792
WS_KVT = 0
WS_Y = 2 << 20
WS_H = 4 << 20
WS_G = 12 << 20
WS_FLAG = 13 << 20
WS_SIZE = 16 << 20

sW, sXCD, sJ = 's4', 's5', 's6'
SRD_Q, SRD_K, SRD_V, SRD_SH, SRD_SK, SRD_W, SRD_WD, SRD_GW, SRD_OUT, SRD_WS, SRD_DBG = \
    ['s[%d:%d]' % (8 + 4 * i, 11 + 4 * i) for i in range(11)]
sDP = (52, 53)

def prologue(a, nwg=256):
    a(f'''s_cmp_ge_u32 s2, {nwg}
          s_cbranch_scc1 L_end_{a.kname}
          s_load_dwordx16 s[56:71], s[0:1], 0
          s_load_dwordx8 s[72:79], s[0:1], 64
          s_load_dwordx4 s[80:83], s[0:1], 96
          v_lshrrev_b32 v1, 6, v0
          s_and_b32 {sXCD}, s2, 7
          v_readfirstlane_b32 {sW}, v1
          s_lshr_b32 {sJ}, s2, 3
          v_and_b32 v0, 63, v0
          s_waitcnt lgkmcnt(0)''')
    def srd(base, lo, size):
        a(f'''s_mov_b32 s{base}, s{lo}
              s_mov_b32 s{base+1}, s{lo+1}
              s_mov_b32 s{base+2}, {size}
              s_mov_b32 s{base+3}, 0x20000''')
    srd(8, 56, S*D*2); srd(12, 58, S*D*2); srd(16, 60, S*D*2); srd(20, 62, D*8); srd(24, 64, D*S*2)
    a(f'''s_cmp_lt_u32 {sW}, 2
          s_cselect_b32 s28, s70, s72
          s_cselect_b32 s29, s71, s73
          s_mov_b32 s30, {D*F*2}
          s_mov_b32 s31, 0x20000''')
    srd(32, 74, F*D*2); srd(36, 76, D*2); srd(40, 78, S*D*2); srd(44, 82, WS_SIZE); srd(48, 80, 256)
    a('s_mov_b32 s52, s66\ns_mov_b32 s53, s67')

def gate_rows(a, srow, vt, st, sc=''):
    q0, q1, gw, ad, z0, z1 = vt, vt+4, vt+8, vt+12, vt+13, vt+14
    a(f'''s_lshl_b32 s{st}, {sW}, 1
          s_add_u32 s{st}, s{st}, {srow}
          s_lshl_b32 s{st+1}, s{st}, 10
          v_lshlrev_b32 v{ad}, 4, v0
          buffer_load_dwordx4 v[{gw}:{gw+3}], v{ad}, {SRD_GW}, 0 offen
          buffer_load_dwordx4 v[{q0}:{q0+3}], v{ad}, {SRD_Q}, s{st+1} offen
          buffer_load_dwordx4 v[{q1}:{q1+3}], v{ad}, {SRD_Q}, s{st+1} offen offset:1024''')
    for i in range(4):
        a(f'v_dot2_f32_bf16 v{z0}, v{q0+i}, v{gw+i}, ' + ('0' if i == 0 else f'v{z0}'))
        a(f'v_dot2_f32_bf16 v{z1}, v{q1+i}, v{gw+i}, ' + ('0' if i == 0 else f'v{z1}'))
    for r in (8, 4, 2, 1):
        a(f'v_add_f32_dpp v{z0}, v{z0}, v{z0} row_ror:{r} row_mask:0xf bank_mask:0xf')
        a(f'v_add_f32_dpp v{z1}, v{z1}, v{z1} row_ror:{r} row_mask:0xf bank_mask:0xf')
    a(f'''v_permlane16_swap_b32 v{z0}, v{z1}
          v_add_f32 v{z0}, v{z0}, v{z1}
          v_mov_b32 v{z1}, v{z0}
          v_permlane32_swap_b32 v{z0}, v{z1}
          v_add_f32 v{z0}, v{z0}, v{z1}
          v_cvt_pk_bf16_f32 v{z0}, v{z0}, v{z0}
          v_and_b32 v{z0}, 0xffff0000, v{z0}
          v_mul_f32 v{z0}, 0xbfb8aa3b, v{z0}
          v_exp_f32 v{z0}, v{z0}
          v_add_f32 v{z0}, 1.0, v{z0}
          v_rcp_f32 v{z0}, v{z0}
          v_cvt_pk_bf16_f32 v{z0}, v{z0}, v{z0}
          v_and_b32 v{q0}, 0xffff0000, v{z0}
          v_sub_f32 v{z0}, 1.0, v{q0}
          v_cvt_pk_bf16_f32 v{z0}, v{z0}, v{z0}
          v_and_b32 v{q0+1}, 0xffff0000, v{z0}
          v_lshrrev_b32 v{ad}, 1, v0
          s_lshl_b32 s{st}, s{st}, 3
          s_add_u32 s{st}, s{st}, {WS_G}
          s_mov_b64 exec, 0x10001
          buffer_store_dwordx2 v[{q0}:{q0+1}], v{ad}, {SRD_WS}, s{st} offen {sc}
          s_mov_b64 exec, -1''', tag='gst')

def p0(a, lds, vt, st, sc=''):
    KB, VB, TB = lds, lds + 9*1024, lds + 17*1024
    ko, kh, sh, tmp = vt, vt+1, vt+2, vt+4
    P = vt + 6
    Vv = vt + 16
    Q = vt + 24
    R = vt + 34
    O = vt + 50
    a(f'''v_lshrrev_b32 v{tmp}, 3, v0
          v_lshlrev_b32 v{tmp}, 10, v{tmp}
          v_and_b32 v{ko}, 7, v0
          v_lshl_add_u32 v{ko}, v{ko}, 4, v{tmp}
          s_lshl_b32 s{st}, {sJ}, 16
          s_lshl_b32 s{st+1}, {sXCD}, 7
          s_add_u32 s{st}, s{st}, s{st+1}
          v_add_u32 v{ko}, s{st}, v{ko}
          v_subrev_u32 v{kh}, 8192, v{ko}
          s_cmp_lg_u32 {sW}, 0''')
    L = a.newlabel('L_nohalo')
    a(f'''s_cbranch_scc1 {L}
          s_mov_b32 m0, {KB}
          buffer_load_dwordx4 v{kh}, {SRD_K}, 0 offen lds''', tag='p0dma')
    a.label(L)
    a(f'''s_lshl_b32 s{st}, {sW}, 13
          s_add_u32 s{st+1}, s{st}, 32768
          s_lshl_b32 s{st+2}, {sW}, 10
          v_and_b32 v{tmp}, 15, v0
          v_lshlrev_b32 v{tmp}, 3, v{tmp}
          s_lshl_b32 s{st+3}, {sXCD}, 9
          s_lshl_b32 s{st+4}, {sW}, 7
          s_add_u32 s{st+3}, s{st+3}, s{st+4}''')
    for srd, base in ((SRD_K, KB + 1024), (SRD_V, VB)):
        for jj in range(2):
            a(f'''s_add_u32 m0, s{st+2}, {base + jj*4096}
                  buffer_load_dwordx4 v{ko}, {srd}, s{st+jj} offen lds''', tag='p0dma')
    a(f'''buffer_load_dwordx2 v[{sh}:{sh+1}], v{tmp}, {SRD_SH}, s{st+3} offen''')
    a(f'''v_lshrrev_b32 v{tmp}, 4, v0
          v_lshlrev_b32 v{tmp}, 11, v{tmp}
          v_bfe_u32 v{tmp+1}, v0, 2, 2
          v_lshl_add_u32 v{tmp}, v{tmp+1}, 7, v{tmp}
          v_and_b32 v{tmp+1}, 3, v0
          v_lshl_add_u32 v{tmp}, v{tmp+1}, 3, v{tmp}
          s_lshl_b32 s{st}, {sW}, 5
          s_add_u32 s{st}, s{st}, {lds}
          v_add_u32 v{tmp}, s{st}, v{tmp}''')
    a.wait_vm('p0dma')
    a('s_barrier')
    for i in range(5):
        a(f'ds_read_b64_tr_b16 v[{P+2*i}:{P+2*i+1}], v{tmp} offset:{512 + 512*i}')
    for i in range(4):
        a(f'ds_read_b64_tr_b16 v[{Vv+2*i}:{Vv+2*i+1}], v{tmp} offset:{9*1024 + 512*i}')
    a(f'''v_alignbit_b32 v{sh}, v{sh}, v{sh}, 16
          v_alignbit_b32 v{sh+1}, v{sh+1}, v{sh+1}, 16''')
    for i in range(1, 10):
        a(f'v_alignbit_b32 v{Q+i-1}, v{P+i}, v{P+i-1}, 16')
    for i in range(8):
        a(f'v_dot2_f32_bf16 v{R+2*i}, v{Q+i+1}, v{sh}, 0')
        a(f'v_dot2_f32_bf16 v{R+2*i+1}, v{P+i+2}, v{sh}, 0')
    for i in range(8):
        a(f'v_dot2_f32_bf16 v{R+2*i}, v{Q+i}, v{sh+1}, v{R+2*i}')
        a(f'v_dot2_f32_bf16 v{R+2*i+1}, v{P+i+1}, v{sh+1}, v{R+2*i+1}')
    for i in range(8):
        a(f'''v_lshlrev_b32 v{Q}, 16, v{Vv+i}
              v_and_b32 v{Vv+i}, 0xffff0000, v{Vv+i}
              v_mul_f32 v{R+2*i}, v{R+2*i}, v{Q}
              v_mul_f32 v{R+2*i+1}, v{R+2*i+1}, v{Vv+i}''')
    for j in range(2):
        for d in range(4):
            a(f'v_cvt_pk_bf16_f32 v{O+4*j+d}, v{R+8*j+7-2*d}, v{R+8*j+6-2*d}')
    a(f'''v_and_b32 v{ko}, 15, v0
          v_mul_u32_u24 v{ko}, 144, v{ko}
          v_lshrrev_b32 v{kh}, 4, v0
          v_lshl_add_u32 v{ko}, v{kh}, 5, v{ko}
          s_mul_i32 s{st}, {sW}, 2304
          s_add_u32 s{st}, s{st}, {TB}
          v_add_u32 v{ko}, s{st}, v{ko}
          ds_write_b128 v{ko}, v[{O}:{O+3}]
          ds_write_b128 v{ko}, v[{O+4}:{O+7}] offset:16
          v_lshrrev_b32 v{kh}, 3, v0
          v_mul_u32_u24 v{tmp}, 144, v{kh}
          v_and_b32 v{tmp+1}, 7, v0
          v_lshl_add_u32 v{tmp}, v{tmp+1}, 4, v{tmp}
          v_add_u32 v{tmp}, s{st}, v{tmp}
          ds_read_b128 v[{R}:{R+3}], v{tmp}
          ds_read_b128 v[{R+4}:{R+7}], v{tmp} offset:{8*144}
          v_lshlrev_b32 v{kh}, 12, v{kh}
          v_lshl_add_u32 v{kh}, v{tmp+1}, 4, v{kh}
          s_lshl_b32 s{st}, {sXCD}, 18
          s_lshl_b32 s{st+1}, {sW}, 16
          s_add_u32 s{st}, s{st}, s{st+1}
          s_lshl_b32 s{st+1}, {sJ}, 7
          s_add_u32 s{st}, s{st}, s{st+1}
          s_add_u32 s{st}, s{st}, {WS_KVT}
          s_add_u32 s{st+1}, s{st}, 32768''')
    a(f'''buffer_store_dwordx4 v[{R}:{R+3}], v{kh}, {SRD_WS}, s{st} offen {sc}
          buffer_store_dwordx4 v[{R+4}:{R+7}], v{kh}, {SRD_WS}, s{st+1} offen {sc}''', tag='kvst')

G1_XS = 16384
G1_WB = 49152
G1_WS = 28928
G1_UP = 14464
G1_END = G1_WB + 3*G1_WS

class G1:
    ACC = 16
    XR = 128
    WR = 132
    XD = 134
    WD = 138
    T = 146
    sRB, sFS, sROT, sXO, sWO, sM = 's54', 's55', 's84', 's85', 's86', 's87'
    sXC, sWC = 's88', 's89'

def g1_setup(a, rot=True):
    g = G1; T = g.T
    a(f'''s_and_b32 {g.sRB}, {sXCD}, 1
          s_lshl_b32 {g.sRB}, {g.sRB}, 3
          s_and_b32 s3, {sJ}, 7
          s_add_u32 {g.sRB}, {g.sRB}, s3
          s_lshr_b32 {g.sFS}, {sXCD}, 1
          s_lshl_b32 {g.sFS}, {g.sFS}, 2
          s_lshr_b32 s3, {sJ}, 3
          s_add_u32 {g.sFS}, {g.sFS}, s3''')
    if rot:
        a(f's_lshl_b32 {g.sROT}, {g.sFS}, 1\ns_add_u32 {g.sROT}, {g.sROT}, {g.sRB}')
    else:
        a(f's_mov_b32 {g.sROT}, 0')
    a(f'''s_lshl_b32 {g.sXO}, {g.sRB}, 17
          s_lshl_b32 s3, {sW}, 15
          s_add_u32 {g.sXO}, {g.sXO}, s3
          s_mul_i32 {g.sWO}, {g.sFS}, 224
          s_and_b32 s3, {sW}, 1
          s_mul_i32 s3, s3, {32*3584}
          s_add_u32 {g.sWO}, {g.sWO}, s3''')
    a(f'''v_lshrrev_b32 v{T}, 3, v0
          v_lshlrev_b32 v{T}, 10, v{T}
          v_lshrrev_b32 v{T+1}, 4, v0
          v_and_b32 v{T+2}, 7, v0
          v_xor_b32 v{T+1}, v{T+1}, v{T+2}
          v_lshl_add_u32 v{g.XD}, v{T+1}, 4, v{T}
          v_xor_b32 v{g.XD+1}, 64, v{g.XD}
          v_add_u32 v{g.XD+1}, {8192-1024}, v{g.XD+1}
          v_add_u32 v{g.XD+2}, {2*(8192-1024)}, v{g.XD}
          v_add_u32 v{g.XD+3}, {2*(8192-1024)}, v{g.XD+1}
          s_mov_b32 s3, {(2**32 + 13)//14}''')
    for u in range(7):
        a(f'''v_add_u32 v{T}, {64*u}, v0
              v_mul_hi_u32 v{T+1}, v{T}, s3
              v_mul_u32_u24 v{T+1}, {3584-224}, v{T+1}
              v_lshl_add_u32 v{g.WD+u}, v{T}, 4, v{T+1}''')
        if u % 4: a(f'v_subrev_u32 v{g.WD+u}, {1024*(u%4)}, v{g.WD+u}')
    a(f'''v_and_b32 v{T}, 31, v0
          v_lshrrev_b32 v{T+1}, 5, v0
          v_bfe_u32 v{T+2}, v0, 1, 3
          v_xor_b32 v{T+1}, v{T+1}, v{T+2}
          v_lshlrev_b32 v{T}, 7, v{T}
          v_lshl_add_u32 v{T}, v{T+1}, 4, v{T}
          s_lshl_b32 s3, {sW}, 12
          v_add_u32 v{g.XR}, s3, v{T}
          v_xor_b32 v{g.XR+1}, 32, v{g.XR}
          v_xor_b32 v{g.XR+2}, 64, v{g.XR}
          v_xor_b32 v{g.XR+3}, 96, v{g.XR}''')
    a(f'''v_bfe_u32 v{T}, v0, 4, 1
          v_mul_u32_u24 v{T}, {G1_UP}, v{T}
          v_lshrrev_b32 v{T+1}, 5, v0
          v_lshlrev_b32 v{T+1}, 3, v{T+1}
          v_bfe_u32 v{T+2}, v0, 2, 2
          v_add_u32 v{T+1}, v{T+1}, v{T+2}
          v_mul_u32_u24 v{T+1}, 224, v{T+1}
          v_and_b32 v{T+2}, 3, v0
          v_lshl_add_u32 v{T+1}, v{T+2}, 3, v{T+1}
          v_add_u32 v{T}, v{T}, v{T+1}
          v_add_u32 v{g.WR}, {G1_WB}, v{T}
          v_add_u32 v{g.WR+1}, {G1_WB + 2*G1_WS}, v{T}''')
    a(f'''s_lshr_b32 s3, {sW}, 1
          s_mul_i32 {g.sM}, s3, {G1_UP}
          s_and_b32 s3, {sW}, 1
          s_mul_i32 s3, s3, 7168
          s_add_u32 {g.sM}, {g.sM}, s3
          s_add_u32 {g.sM}, {g.sM}, {G1_WB}
          s_lshl_b32 s90, {sW}, 12''')

def g1_dma_items(c):
    g = G1; slot = c % 3; tag = f'g1dma{c}'
    it = []
    it.append([(f's_add_u32 s3, {g.sROT}, {c}', None), ('s_and_b32 s3, s3, 7', None)])
    it.append([(f's_lshl_b32 {g.sXC}, s3, 7', None), (f's_mul_i32 {g.sWC}, s3, {64*3584}', None)])
    it.append([(f's_add_u32 {g.sXC}, {g.sXC}, {g.sXO}', None), (f's_add_u32 {g.sWC}, {g.sWC}, {g.sWO}', None)])
    for i in range(4):
        grp = []
        if i == 0: grp.append((f's_add_u32 m0, s90, {slot*G1_XS}', None))
        grp.append((f'buffer_load_dwordx4 v{g.XD+i}, {SRD_Q}, {g.sXC} offen offset:{1024*i} lds', tag))
        it.append(grp)
    for u in range(7):
        grp = []
        if u % 4 == 0: grp.append((f's_add_u32 m0, {g.sM}, {slot*G1_WS + 1024*u}', None))
        grp.append((f'buffer_load_dwordx4 v{g.WD+u}, {SRD_W}, {g.sWC} offen offset:{1024*(u%4)} lds', tag))
        it.append(grp)
    return it

def g1_reads(k):
    g = G1; c, ks = k >> 2, k & 3; slot = c % 3; buf = (k & 1)*32
    r = [f'ds_read_b128 a[{buf+28}:{buf+31}], v{g.XR+ks} offset:{slot*G1_XS}']
    for t in range(7):
        for m in range(2):
            off = (16*ks + 4*m)*224 + 32*t + (G1_WS if slot == 1 else 0)
            r.append(f'ds_read_b64_tr_b16 a[{buf+4*t+2*m}:{buf+4*t+2*m+1}], v{g.WR + (1 if slot == 2 else 0)} offset:{off}')
    return r

def g1_mfma(k, t):
    g = G1; buf = (k & 1)*32; A = g.ACC + 16*t
    return f'v_mfma_f32_32x32x16_bf16 v[{A}:{A+15}], a[{buf+4*t}:{buf+4*t+3}], a[{buf+28}:{buf+31}], ' + ('0' if k == 0 else f'v[{A}:{A+15}]')

def g1_main(a, sc=''):
    g = G1
    for c in range(3):
        for grp in g1_dma_items(c):
            for txt, tag in grp: a(txt, tag)
    stamp(a, 8)
    a.wait_vm('g1dma0')
    a('s_barrier')
    stamp(a, 9)
    for r in g1_reads(0): a(r)
    pend = []
    for k in range(32):
        c, ks = k >> 2, k & 3
        reads = g1_reads(k+1) if k < 31 else []
        gaps = [[] for _ in range(7)]
        first = 0
        if ks == 3 and k < 31:
            gaps[0] = ['BAR']; first = 1
            if c + 3 < 8 and not a.opts.get('nodma'): pend = g1_dma_items(c + 3)
        if a.opts.get('noreads'): reads = []
        for i, r in enumerate(reads): gaps[first + i//3].append((r, None))
        free = [gp for gp in range(7) if gp >= first + 5] if reads else list(range(7))
        nper = 2 if len(free) >= 2 else 3
        for gp in free:
            for _ in range(nper):
                if pend: gaps[gp] += pend.pop(0)
        for t in range(7):
            a(g1_mfma(k, t))
            for it in gaps[t]:
                if it == 'BAR' and a.opts.get('nobar'): pass
                elif it == 'BAR':
                    a.wait_vm(f'g1dma{c+1}')
                    a('s_waitcnt lgkmcnt(0)')
                    a('s_barrier')
                    if c in (0, 2, 4, 6): stamp(a, 10 + c//2)
                else: a(it[0], it[1])
    assert not pend
    stamp(a, 14)
    T = g.T
    a(f'''s_lshl_b32 s3, {g.sRB}, 2
          s_add_u32 s3, s3, {sW}
          s_mul_i32 s3, s3, 112
          s_mul_i32 s54, {g.sFS}, 7
          s_add_u32 s3, s3, s54
          s_lshl_b32 s3, s3, 10
          s_add_u32 s3, s3, {WS_H}
          s_add_u32 s54, s3, 4096
          v_lshlrev_b32 v{T}, 4, v0''')
    for t in range(7):
        A = g.ACC + 16*t
        for j in range(8): a(f'v_max_f32 v{A+j}, 0, v{A+j}')
        for j in range(0, 8, 2): a(f'v_pk_mul_f32 v[{A+j}:{A+j+1}], v[{A+j}:{A+j+1}], v[{A+8+j}:{A+9+j}]')
        for j in range(4): a(f'v_cvt_pk_bf16_f32 v{A+8+j}, v{A+2*j}, v{A+2*j+1}')
        a(f'buffer_store_dwordx4 v[{A+8}:{A+11}], v{T}, {SRD_WS}, {"s3" if t < 4 else "s54"} offen offset:{1024*(t%4)} {sc}', tag='hst')

CV_U = 4608
CV_KS = 4160
CV_K = 4*CV_KS
class CV:
    ACC = 16
    T = 48
    UB = 0
    AF = 128
    NA = 8

def conv(a, lds, sc=''):
    cv = CV; T = cv.T
    UL = lds; KL = lds + 2*CV_U; RL = KL + 2*CV_K
    sCH, sP, sC, sD, sU, sK = 's54', 's55', 's84', 's85', 's86', 's87'
    a(f'''s_lshr_b32 {sCH}, {sW}, 1
          s_and_b32 {sP}, {sW}, 1
          s_lshl_b32 {sC}, {sXCD}, 6
          s_lshl_b32 s3, {sJ}, 1
          s_add_u32 {sC}, {sC}, s3
          s_lshl_b32 s88, {sC}, 1
          s_add_u32 {sC}, {sC}, {sCH}
          s_load_dword {sD}, s[{sDP[0]}:{sDP[1]}], s88
          s_mul_i32 {sU}, {sCH}, {CV_U}
          s_add_u32 {sU}, {sU}, {UL}
          s_mul_i32 {sK}, {sCH}, {CV_K}
          s_add_u32 {sK}, {sK}, {KL}
          s_lshl_b32 s89, {sC}, 12
          s_lshl_b32 s3, {sP}, 11
          s_add_u32 s90, s89, s3
          v_lshlrev_b32 v{T}, 4, v0''')
    a(f'''s_add_u32 s91, s90, {WS_KVT}
          s_add_u32 s3, s3, {sU}
          s_add_u32 m0, s3, 512
          buffer_load_dwordx4 v{T}, {SRD_WS}, s91 offen {sc} lds
          buffer_load_dwordx4 v{T}, {SRD_WS}, s91 offen offset:1024 {sc} lds''', tag='udma')
    KA = T + 4
    a(f'''s_lshl_b32 s3, {sP}, 10
          s_add_u32 s89, s89, s3''')
    for r in range(2):
        a(f'''buffer_load_dwordx4 v[{KA+8*r}:{KA+8*r+3}], v{T}, {SRD_SK}, s89 offen offset:{2048*r}
              buffer_load_dwordx4 v[{KA+8*r+4}:{KA+8*r+7}], v{T}, {SRD_SK}, s89 offen offset:{2048*r+16}''')
    Z = T + 20
    a(f'''v_mov_b32 v{Z}, 0
          v_mov_b32 v{Z+1}, 0
          v_mov_b32 v{Z+2}, 0
          v_mov_b32 v{Z+3}, 0
          v_add_u32 v{T+1}, {sU}, v{T}
          v_subrev_u32 v{T+2}, 32, v0
          v_lshrrev_b32 v{T+3}, 1, v{T+2}
          v_mul_u32_u24 v{T+3}, {CV_KS}, v{T+3}
          v_and_b32 v{T+2}, 1, v0
          v_lshl_add_u32 v{T+3}, v{T+2}, 4, v{T+3}
          v_add_u32 v{T+3}, {sK}, v{T+3}
          v_cmp_gt_u32 vcc, 32, v0
          v_cndmask_b32 v{T+1}, v{T+3}, v{T+1}, vcc
          s_mov_b32 exec_hi, 0xff
          s_cmp_lg_u32 {sP}, 0''')
    L = a.newlabel('L_cvz')
    a(f'''s_cbranch_scc1 {L}
          ds_write_b128 v{T+1}, v[{Z}:{Z+3}]''')
    a.label(L)
    a('s_mov_b64 exec, -1')
    a(f'''s_lshl_b32 s3, {sP}, 10
          s_add_u32 s3, s3, {sK}
          v_add_u32 v{T+1}, s3, v{T}''')
    C1, C2, C3 = T + 24, T + 28, T + 32
    for r in range(2):
        A = KA + 8*r
        for i in range(4): a(f'v_alignbit_b32 v{C1+i}, v{A+i+1}, v{A+i}, 16')
        for i in range(4): a(f'v_mov_b32 v{C2+i}, v{A+i+1}')
        for i in range(3): a(f'v_mov_b32 v{C3+i}, v{C1+i+1}')
        a(f'v_alignbit_b32 v{C3+3}, v{A+5}, v{A+4}, 16')
        off = 32 + 2048*r
        a(f'''ds_write_b128 v{T+1}, v[{A}:{A+3}] offset:{off}
              ds_write_b128 v{T+1}, v[{C1}:{C1+3}] offset:{off + CV_KS}
              ds_write_b128 v{T+1}, v[{C2}:{C2+3}] offset:{off + 2*CV_KS}
              ds_write_b128 v{T+1}, v[{C3}:{C3+3}] offset:{off + 3*CV_KS}''')
        if r == 0:
            L = a.newlabel('L_cvh')
            a(f'''v_lshlrev_b32 v{Z}, 16, v{A}
                  s_cmp_lg_u32 {sP}, 0
                  s_cbranch_scc1 {L}
                  s_mov_b64 exec, 1
                  ds_write_b32 v{T+1}, v{Z} offset:{CV_KS + 28}
                  ds_write_b32 v{T+1}, v{A} offset:{2*CV_KS + 28}
                  ds_write_b32 v{T+1}, v{Z} offset:{3*CV_KS + 24}
                  ds_write_b32 v{T+1}, v{C1} offset:{3*CV_KS + 28}
                  s_mov_b64 exec, -1''')
            a.label(L)
    vA, vU, vDt = T + 1, T + 2, T + 3
    a(f'''v_and_b32 v{Z}, 15, v0
          v_lshrrev_b32 v{Z+1}, 4, v0
          v_add_u32 v{Z+2}, 1, v{Z}
          v_and_b32 v{Z+3}, 3, v{Z+2}
          v_mul_u32_u24 v{vA}, {CV_KS}, v{Z+3}
          v_and_b32 v{Z+2}, 28, v{Z+2}
          v_lshlrev_b32 v{Z+3}, 3, v{Z+1}
          v_sub_u32 v{Z+2}, v{Z+2}, v{Z+3}
          v_add_u32 v{Z+2}, 24, v{Z+2}
          v_lshl_add_u32 v{vA}, v{Z+2}, 1, v{vA}
          s_lshl_b32 s3, {sP}, 6
          s_add_u32 s88, s3, {sK}
          v_add_u32 v{vA}, s88, v{vA}
          v_lshl_add_u32 v{vU}, v{Z}, 1, v{Z+1}
          v_lshlrev_b32 v{vU}, 4, v{vU}
          s_sub_u32 s88, {sU}, s3
          s_add_u32 s88, s88, {30*16 - 384}
          v_add_u32 v{vU}, s88, v{vU}
          v_lshrrev_b32 v{Z+2}, 1, v{Z+1}
          v_lshl_add_u32 v{Z+2}, v{Z}, 1, v{Z+2}
          v_lshlrev_b32 v{vDt}, 4, v{Z+2}
          v_and_b32 v{Z+2}, 1, v{Z+1}
          v_lshlrev_b32 v{Z+2}, 3, v{Z+2}
          v_sub_u32 v{vDt}, v{vDt}, v{Z+2}
          s_lshl_b32 s3, {sP}, 11
          s_add_u32 s88, s3, {sU}
          s_add_u32 s88, s88, {512 + 8}
          v_add_u32 v{vDt}, s88, v{vDt}''')
    a.wait_vm('udma')
    a('s_waitcnt lgkmcnt(0)')
    a(f'''s_lshr_b32 s3, {sD}, 16
          s_cmp_eq_u32 {sCH}, 0
          s_cselect_b32 {sD}, {sD}, s3
          s_lshl_b32 {sD}, {sD}, 16
          s_barrier''')
    def rdA(e):
        b = cv.AF + 4*(e % cv.NA)
        return [f'ds_read_b64 a[{b}:{b+1}], v{vA} offset:{128*e}', f'ds_read_b64 a[{b+2}:{b+3}], v{vA} offset:{128*e+8}']
    def rdU(mu):
        b = cv.UB + 4*(mu + 3)
        return f'ds_read_b128 a[{b}:{b+3}], v{vU} offset:{128*(mu+3)}'
    LA = 3
    for e in range(LA):
        if e == 1:
            for n in range(8): a(rdU(4*n))
        for r in rdA(e): a(r)
    for e in range(32):
        fill = []
        if e + LA < 32: fill += rdA(e + LA)
        if e < 3: fill = [rdU(4*n - (e+1)) for n in range(8)] + fill
        ns = list(range(e >> 2, 8))
        per = -(-len(fill) // len(ns))
        for n in ns:
            b = cv.AF + 4*(e % cv.NA); u = cv.UB + 4*(4*n - e + 3); A = cv.ACC + 4*n
            a(f'v_mfma_f32_16x16x32_bf16 v[{A}:{A+3}], a[{b}:{b+3}], a[{u}:{u+3}], ' + ('0' if e == 0 else f'v[{A}:{A+3}]'))
            for _ in range(per):
                if fill: a(fill.pop(0))
    X = T + 4
    U2 = T + 20
    a(f'''s_lshl_b32 s3, {sW}, 12
          s_add_u32 s88, s3, {RL}
          v_add_u32 v{Z+8}, s88, v{T}
          s_xor_b32 s88, s3, 4096
          s_add_u32 s88, s88, {RL}
          v_add_u32 v{Z+9}, s88, v{T}''')
    for i in range(4): a(f'ds_read_b64 v[{U2+2*i}:{U2+2*i+1}], v{vDt} offset:{512*i}')
    L1 = a.newlabel('L_cvp1'); L2 = a.newlabel('L_cvp2')
    a(f's_nop 7\ns_cmp_lg_u32 {sP}, 0\ns_cbranch_scc1 {L1}')
    for i in range(4): a(f'ds_write_b128 v{Z+8}, v[{cv.ACC+16+4*i}:{cv.ACC+19+4*i}] offset:{1024*i}')
    a(f's_branch {L2}')
    a.label(L1)
    for i in range(4): a(f'ds_write_b128 v{Z+8}, v[{cv.ACC+4*i}:{cv.ACC+3+4*i}] offset:{1024*i}')
    for i in range(16): a(f'v_mov_b32 v{cv.ACC+i}, v{cv.ACC+16+i}')
    a.label(L2)
    a('s_waitcnt lgkmcnt(0)\ns_barrier')
    for i in range(4): a(f'ds_read_b128 v[{X+4*i}:{X+4*i+3}], v{Z+9} offset:{1024*i}')
    A = cv.ACC; E = cv.ACC + 16
    for i in range(4):
        a(f'''v_and_b32 v{E+4*i}, 0xffff0000, v{U2+2*i+1}
              v_lshlrev_b32 v{E+4*i+1}, 16, v{U2+2*i+1}
              v_and_b32 v{E+4*i+2}, 0xffff0000, v{U2+2*i}
              v_lshlrev_b32 v{E+4*i+3}, 16, v{U2+2*i}''')
    for i in range(16): a(f'v_fmac_f32 v{A+i}, {sD}, v{E+i}')
    for i in range(0, 16, 2): a(f'v_pk_add_f32 v[{A+i}:{A+i+1}], v[{A+i}:{A+i+1}], v[{X+i}:{X+i+1}]')
    for i in range(8): a(f'v_cvt_pk_bf16_f32 v{E+i}, v{A+2*i}, v{A+2*i+1}')
    a(f'''v_bfe_u32 v{X}, v0, 4, 1
          v_bfe_u32 v{X+1}, v0, 2, 2
          v_lshl_add_u32 v{X}, v{X}, 2, v{X+1}
          v_lshlrev_b32 v{X}, 7, v{X}
          v_lshrrev_b32 v{X+1}, 5, v0
          v_and_b32 v{X+2}, 3, v0
          v_lshl_add_u32 v{X+1}, v{X+1}, 2, v{X+2}
          v_lshl_add_u32 v{X}, v{X+1}, 4, v{X}
          s_add_u32 s90, s90, {WS_Y}''')
    for i in range(2):
        a(f'''v_permlane16_swap_b32 v{E+4*i}, v{E+4*i+2}
              v_permlane16_swap_b32 v{E+4*i+1}, v{E+4*i+3}''')
        a(f'buffer_store_dwordx4 v[{E+4*i}:{E+4*i+3}], v{X}, {SRD_WS}, s90 offen offset:{1024*i} {sc}', tag='yst')

class G2:
    ACC = 16
    HB = 80
    NH = 12
    T = 176
    AF = 0
    NA = 4
    NW = 12

def g2(a, lds, sc=''):
    q = G2; T = q.T
    WL = lds
    QL = lds + 4*q.NW*2048
    YL = QL + 8192
    RL = lds
    sSB, sDB, sWD, sH0, sH1, sM = 's54', 's55', 's84', 's85', 's86', 's87'
    vWD, vL16, vA0, vA1 = T, T+1, T+2, T+3
    a(f'''s_lshl_b32 {sSB}, {sXCD}, 2
          s_and_b32 s3, {sJ}, 3
          s_add_u32 {sSB}, {sSB}, s3
          s_lshr_b32 {sDB}, {sJ}, 2
          s_mul_i32 {sWD}, {sW}, {448*1024}
          s_lshl_b32 s3, {sDB}, 7
          s_add_u32 {sWD}, {sWD}, s3
          s_lshl_b32 s3, {sSB}, 1
          s_and_b32 s88, {sW}, 1
          s_add_u32 s89, s3, s88
          s_xor_b32 s88, s88, 1
          s_add_u32 s88, s3, s88
          s_mul_i32 {sH0}, s89, {112*1024}
          s_mul_i32 {sH1}, s88, {112*1024}
          s_mul_i32 s3, {sW}, {28*1024}
          s_add_u32 s3, s3, {WS_H}
          s_add_u32 {sH0}, {sH0}, s3
          s_add_u32 {sH1}, {sH1}, s3
          s_mul_i32 {sM}, {sW}, {q.NW*2048}
          s_add_u32 {sM}, {sM}, {WL}
          v_lshlrev_b32 v{vL16}, 4, v0
          v_lshrrev_b32 v{vWD}, 3, v0
          v_lshlrev_b32 v{vWD}, 10, v{vWD}
          v_bfe_u32 v{T+4}, v0, 4, 1
          v_lshlrev_b32 v{T+4}, 2, v{T+4}
          v_and_b32 v{T+5}, 7, v0
          v_xor_b32 v{T+4}, v{T+4}, v{T+5}
          v_lshl_add_u32 v{vWD}, v{T+4}, 4, v{vWD}
          v_add_u32 v{T+6}, {8192-1024}, v{vWD}''')
    vWD1 = T + 6
    a(f'''v_lshrrev_b32 v{T+4}, 5, v0
          v_bfe_u32 v{T+5}, v0, 2, 2
          v_lshl_add_u32 v{T+4}, v{T+4}, 2, v{T+5}
          v_lshlrev_b32 v{vA0}, 7, v{T+4}
          v_bfe_u32 v{T+4}, v0, 3, 1
          s_lshr_b32 s3, {sW}, 1
          v_xor_b32 v{T+4}, s3, v{T+4}
          v_lshl_add_u32 v{vA0}, v{T+4}, 6, v{vA0}
          v_bfe_u32 v{T+4}, v0, 4, 1
          v_lshl_add_u32 v{vA0}, v{T+4}, 5, v{vA0}
          v_and_b32 v{T+4}, 3, v0
          v_lshl_add_u32 v{vA0}, v{T+4}, 3, v{vA0}
          v_add_u32 v{vA0}, {sM}, v{vA0}
          v_xor_b32 v{vA1}, 64, v{vA0}''')
    def dmaW(ft):
        sl = ft % q.NW
        return [(f's_add_u32 m0, {sM}, {sl*2048}', None), (f's_add_u32 s3, {sWD}, {ft*16384}', None),
                (f'buffer_load_dwordx4 v{vWD}, {SRD_WD}, s3 offen lds', f'wd{ft}'),
                (f'buffer_load_dwordx4 v{vWD1}, {SRD_WD}, s3 offen offset:1024 lds', f'wd{ft}')]
    def ldH(ft):
        b = q.HB + 8*(ft % q.NH)
        r = []
        if ft % 4 == 0 and ft: r += [(f's_add_u32 {sH0}, {sH0}, 4096', None), (f's_add_u32 {sH1}, {sH1}, 4096', None)]
        r += [(f'buffer_load_dwordx4 v[{b}:{b+3}], v{vL16}, {SRD_WS}, {sH0} offen offset:{1024*(ft%4)} {sc}', None),
              (f'buffer_load_dwordx4 v[{b+4}:{b+7}], v{vL16}, {SRD_WS}, {sH1} offen offset:{1024*(ft%4)} {sc}', None)]
        return r
    def rdA(ft):
        sl = ft % q.NW; b = q.AF + 8*(ft % q.NA)
        return [(f'ds_read_b64_tr_b16 a[{b+4*al+2*m}:{b+4*al+2*m+1}], v{vA0+al} offset:{sl*2048 + 1024*m}', None)
                for al in range(2) for m in range(2)]
    vQ = T + 7; vY = T + 8
    a(f'''v_lshrrev_b32 v{T+4}, 3, v0
          v_and_b32 v{T+5}, 7, v0
          v_lshlrev_b32 v{vQ}, 10, v{T+4}
          v_lshl_add_u32 v{vQ}, v{T+5}, 4, v{vQ}
          v_lshlrev_b32 v{vY}, 12, v{T+4}
          v_lshl_add_u32 v{vY}, v{T+5}, 4, v{vY}
          v_add_u32 v{T+9}, {8192-1024}, v{vQ}
          v_add_u32 v{T+10}, {32768-1024}, v{vY}
          s_lshl_b32 s88, {sSB}, 16
          s_lshl_b32 s3, {sW}, 14
          s_add_u32 s88, s88, s3
          s_lshl_b32 s3, {sDB}, 7
          s_add_u32 s88, s88, s3
          s_lshl_b32 s89, {sDB}, 18
          s_lshl_b32 s3, {sW}, 16
          s_add_u32 s89, s89, s3
          s_lshl_b32 s3, {sSB}, 7
          s_add_u32 s89, s89, s3
          s_add_u32 s89, s89, {WS_Y}
          s_lshl_b32 s90, {sW}, 11''')
    PRE = q.NW - 1
    for ft in range(PRE):
        for t, g in dmaW(ft): a(t, g)
        for t, g in ldH(ft): a(t, g)
    a(f'''s_add_u32 m0, s90, {QL}
          buffer_load_dwordx4 v{vQ}, {SRD_Q}, s88 offen lds
          buffer_load_dwordx4 v{T+9}, {SRD_Q}, s88 offen offset:1024 lds
          s_add_u32 m0, s90, {YL}
          buffer_load_dwordx4 v{vY}, {SRD_WS}, s89 offen {sc} lds
          buffer_load_dwordx4 v{T+10}, {SRD_WS}, s89 offen offset:1024 {sc} lds''', tag='qy')
    vG = T + 12
    a(f'''v_and_b32 v{T+4}, 31, v0
          v_lshlrev_b32 v{T+4}, 3, v{T+4}
          s_lshl_b32 s3, {sSB}, 1
          s_and_b32 s91, {sW}, 1
          s_add_u32 s3, s3, s91
          s_lshl_b32 s3, s3, 8
          s_add_u32 s3, s3, {WS_G}
          buffer_load_dwordx2 v[{vG}:{vG+1}], v{T+4}, {SRD_WS}, s3 offen {sc}''')
    for ft in range(2):
        a.wait_vm(f'wd{ft}')
        for t, g in rdA(ft): a(t, g)
    for ft in range(28):
        fill = []
        if ft + 2 < 28: fill += [('WAIT', ft + 2)] + rdA(ft + 2)
        late = []
        if ft + PRE < 28: late = dmaW(ft + PRE) + ldH(ft + PRE)
        b = q.AF + 8*(ft % q.NA); hb = q.HB + 8*(ft % q.NH)
        for sg in range(4):
            al, be = sg >> 1, sg & 1; A = q.ACC + 16*sg
            a(f'v_mfma_f32_32x32x16_bf16 v[{A}:{A+15}], a[{b+4*al}:{b+4*al+3}], v[{hb+4*be}:{hb+4*be+3}], ' + ('0' if ft == 0 else f'v[{A}:{A+15}]'))
            if sg == 0:
                for t, g in fill:
                    if t == 'WAIT': a.wait_vm(f'wd{g}')
                    else: a(t, g)
            if sg == 3:
                for t, g in late: a(t, g)
    a.wait_vm('qy')
    a('s_barrier')
    QV = q.HB; YV = q.HB + 8; AT = q.HB + 16; X = q.HB + 32
    a(f'''v_and_b32 v{T+4}, 31, v0
          v_lshlrev_b32 v{T+4}, 7, v{T+4}
          v_lshrrev_b32 v{T+5}, 5, v0
          v_lshl_add_u32 v{T+4}, v{T+5}, 3, v{T+4}
          s_and_b32 s3, {sW}, 1
          s_lshl_b32 s3, s3, 12
          s_lshr_b32 s88, {sW}, 1
          s_lshl_b32 s89, s88, 6
          s_add_u32 s3, s3, s89
          s_add_u32 s3, s3, {QL}
          v_add_u32 v{T+4}, s3, v{T+4}''')
    for m in range(4): a(f'ds_read_b64 v[{QV+2*m}:{QV+2*m+1}], v{T+4} offset:{16*m}')
    a(f'''v_lshrrev_b32 v{T+5}, 5, v0
          v_bfe_u32 v{T+6}, v0, 2, 2
          v_lshl_add_u32 v{T+5}, v{T+5}, 2, v{T+6}
          v_lshlrev_b32 v{T+5}, 7, v{T+5}
          v_bfe_u32 v{T+6}, v0, 1, 1
          v_lshl_add_u32 v{T+5}, v{T+6}, 6, v{T+5}
          v_bfe_u32 v{T+6}, v0, 4, 1
          v_lshl_add_u32 v{T+5}, v{T+6}, 4, v{T+5}
          v_and_b32 v{T+6}, 1, v0
          v_lshl_add_u32 v{T+5}, v{T+6}, 3, v{T+5}
          s_and_b32 s3, {sW}, 1
          s_lshl_b32 s3, s3, 5
          s_lshl_b32 s89, s88, 12
          s_add_u32 s3, s3, s89
          s_add_u32 s3, s3, {YL}
          v_add_u32 v{T+5}, s3, v{T+5}''')
    for m in range(4): a(f'ds_read_b64_tr_b16 v[{YV+2*m}:{YV+2*m+1}], v{T+5} offset:{1024*m}')
    for sg in range(1, 4):
        a(f'''s_xor_b32 s3, {sW}, {sg}
              s_lshl_b32 s3, s3, 12
              s_add_u32 s3, s3, {RL + (sg-1)*16384}
              v_add_u32 v{T+6}, s3, v{vL16}''')
        for m in range(4):
            A = q.ACC + 16*sg + 4*m
            a(f'ds_write_b128 v{T+6}, v[{A}:{A+3}] offset:{1024*m}')
    for i in range(8):
        a(f'''v_lshlrev_b32 v{AT+2*i}, 16, v{QV+i}
              v_and_b32 v{AT+2*i+1}, 0xffff0000, v{QV+i}
              v_lshlrev_b32 v{QV+i}, 16, v{YV+i}
              v_and_b32 v{YV+i}, 0xffff0000, v{YV+i}
              v_mul_f32 v{AT+2*i}, v{AT+2*i}, v{QV+i}
              v_mul_f32 v{AT+2*i+1}, v{AT+2*i+1}, v{YV+i}
              v_mul_f32 v{AT+2*i}, v{AT+2*i}, v{vG}
              v_mul_f32 v{AT+2*i+1}, v{AT+2*i+1}, v{vG}''')
    a(f'''s_lshl_b32 s3, {sW}, 12
          s_add_u32 s3, s3, {RL}
          v_add_u32 v{T+6}, s3, v{vL16}
          s_waitcnt lgkmcnt(0)
          s_barrier''')
    for sg in range(1, 4):
        for m in range(4):
            b = X + 16*(sg-1) + 4*m
            a(f'ds_read_b128 v[{b}:{b+3}], v{T+6} offset:{(sg-1)*16384 + 1024*m}')
    A = q.ACC
    for sg in range(1, 4):
        for i in range(0, 16, 2):
            b = X + 16*(sg-1) + i
            a(f'v_pk_add_f32 v[{A+i}:{A+i+1}], v[{A+i}:{A+i+1}], v[{b}:{b+1}]')
    for i in range(16): a(f'v_fmac_f32 v{AT+i}, v{A+i}, v{vG+1}')
    for i in range(8): a(f'v_cvt_pk_bf16_f32 v{A+i}, v{AT+2*i}, v{AT+2*i+1}')
    OL = QL
    a(f'''s_mul_i32 s3, {sW}, 2560
          s_add_u32 s3, s3, {OL}
          v_and_b32 v{T+4}, 31, v0
          v_mul_u32_u24 v{T+4}, 80, v{T+4}
          v_lshrrev_b32 v{T+5}, 5, v0
          v_lshl_add_u32 v{T+4}, v{T+5}, 3, v{T+4}
          v_add_u32 v{T+4}, s3, v{T+4}''')
    for m in range(4): a(f'ds_write_b64 v{T+4}, v[{A+2*m}:{A+2*m+1}] offset:{16*m}')
    a(f'''v_lshrrev_b32 v{T+5}, 2, v0
          v_mul_u32_u24 v{T+6}, 80, v{T+5}
          v_and_b32 v{T+7}, 3, v0
          v_lshl_add_u32 v{T+6}, v{T+7}, 4, v{T+6}
          v_add_u32 v{T+6}, s3, v{T+6}
          ds_read_b128 v[{X}:{X+3}], v{T+6}
          ds_read_b128 v[{X+4}:{X+7}], v{T+6} offset:{16*80}
          v_lshlrev_b32 v{T+5}, 10, v{T+5}
          v_lshl_add_u32 v{T+5}, v{T+7}, 4, v{T+5}
          s_lshl_b32 s3, {sSB}, 1
          s_add_u32 s3, s3, s91
          s_lshl_b32 s3, s3, 15
          s_lshl_b32 s89, {sDB}, 7
          s_add_u32 s3, s3, s89
          s_lshl_b32 s89, s88, 6
          s_add_u32 s3, s3, s89
          s_add_u32 s89, s3, 16384
          buffer_store_dwordx4 v[{X}:{X+3}], v{T+5}, {SRD_OUT}, s3 offen
          buffer_store_dwordx4 v[{X+4}:{X+7}], v{T+5}, {SRD_OUT}, s89 offen''')

WS_STAMP = 14 << 20
NSTAMP = 16
def stamp(a, i):
    if not getattr(a, 'stamps', False): return
    a(f"""{'s_memtime' if getattr(a, 'cyc', 0) else 's_memrealtime'} s[92:93]
          s_waitcnt lgkmcnt(0)
          v_writelane_b32 v255, s92, {i}""")
    a.smask = getattr(a, 'smask', 0) | (1 << i)
def stamp_flush(a):
    if not getattr(a, 'stamps', False): return
    a(f"""s_lshl_b32 s92, s2, 2
          s_add_u32 s92, s92, {sW}
          s_lshl_b32 s92, s92, 6
          s_add_u32 s92, s92, {WS_STAMP}
          v_lshlrev_b32 v254, 2, v0
          s_mov_b64 exec, {a.smask}
          buffer_store_dword v255, v254, {SRD_WS}, s92 offen
          s_mov_b64 exec, -1""")

def kernel_text(kname, body, vgpr, accum):
    return f'''.text
.globl {kname}
.p2align 8
.type {kname},@function
{kname}:
{body}
'''
def descriptor(kname, vgpr, accum):
    return f'''.amdhsa_kernel {kname}
  .amdhsa_next_free_vgpr {vgpr}
  .amdhsa_next_free_sgpr 102
  .amdhsa_accum_offset {accum}
  .amdhsa_group_segment_fixed_size 0
  .amdhsa_kernarg_size 112
  .amdhsa_user_sgpr_count 2
  .amdhsa_user_sgpr_kernarg_segment_ptr 1
  .amdhsa_system_sgpr_workgroup_id_x 1
  .amdhsa_float_denorm_mode_32 3
.end_amdhsa_kernel
'''

def diag_body(ia, ib):
    return f"""    s_cmp_lg_u32 s2, 0
    s_cbranch_scc1 L_diag_end
    s_load_dwordx2 s[4:5], s[0:1], 104
    s_waitcnt lgkmcnt(0)
    s_add_u32 s4, s4, {WS_STAMP}
    s_addc_u32 s5, s5, 0
    s_load_dword s6, s[4:5], {4*ia}
    s_load_dword s7, s[4:5], {4*ib}
    s_memrealtime s[8:9]
    s_waitcnt lgkmcnt(0)
    s_sub_u32 s6, s7, s6
    s_min_u32 s6, s6, 10000
    s_mul_i32 s6, s6, 10
L_diag_loop:
    s_memrealtime s[10:11]
    s_waitcnt lgkmcnt(0)
    s_sub_u32 s10, s10, s8
    s_cmp_lt_u32 s10, s6
    s_cbranch_scc1 L_diag_loop
L_diag_end:
    s_endpgm"""

def build_multi(opts=None):
    opts = opts or {}
    ks = []
    def mk(kname, fn, lds):
        a = Asm(); a.kname = kname; a.stamps = opts.get('stamps', False); a.cyc = opts.get('cyc', 0); a.opts = opts
        i = len(ks)
        prologue(a); stamp(a, 2*i); fn(a)
        if a.stamps: a.fence()
        stamp(a, 2*i + 1); stamp_flush(a)
        a.label(f'L_end_{kname}'); a('s_endpgm')
        ks.append((kname, finalize(a), lds))
    def k_p0(a):
        a('s_lshl_b32 s54, s2, 3')
        gate_rows(a, 's54', 80, 84)
        p0(a, 0, 8, 84)
    def k_g1(a):
        g1_setup(a, rot=opts.get('rot', True)); g1_main(a)
    mk('p0_kernel', k_p0, 27648)
    mk('g1_kernel', k_g1, G1_END)
    mk('conv_kernel', lambda a: conv(a, 0), 2*CV_U + 2*CV_K + 16384)
    mk('g2_kernel', lambda a: g2(a, 0), 4*G2.NW*2048 + 16384)
    if 'diaga' in opts:
        ks.append(('diag_kernel', diag_body(opts['diaga'], opts['diagb']), 0))
    if opts.get('empty'):
        ks.append(('nop_kernel', 's_endpgm', 0))
    out = ['; generated by work/gen.py (hand-designed schedule, python emitted)']
    order = list(ks)
    if opts.get('empty'): order = (ks[:-1] + [ks[-1]]*opts['empty']) if not opts.get('front') else ([ks[-1]]*opts['empty'] + ks[:-1])
    for kname, _, lds in order: out.append(f'; @launch kernel={kname} grid=(256,1,1) block=(256,1,1) lds={lds}')
    out.append('.amdgcn_target "amdgcn-amd-amdhsa--gfx950"')
    for kname, body, _ in ks: out.append(kernel_text(kname, body, 512, 256))
    out.append('.section .rodata,"a"')
    for kname, _, _ in ks: out.append('.p2align 6\n' + descriptor(kname, 512, 256))
    return '\n'.join(out)

if __name__ == '__main__':
    opts = dict(kv.split('=') for kv in sys.argv[2:])
    opts = {k: int(v) for k, v in opts.items()}
    txt = build_multi(opts)
    open(sys.argv[1] if len(sys.argv) > 1 else 'multi.s', 'w').write(txt)
    print(len(txt), 'bytes')
```

```python
import sys
from asmlib import *

NAME = 'gated_mix__ssm_conv_h3__glu_gated_reglu__prompt'
S, D, F = 2048, 512, 1792
WS_KVT = 0
WS_Y = 2 << 20
WS_H = 4 << 20
WS_G = 12 << 20
WS_FLAG = 13 << 20
WS_SIZE = 16 << 20

sW, sXCD, sJ = 's4', 's5', 's6'
SRD_Q, SRD_K, SRD_V, SRD_SH, SRD_SK, SRD_W, SRD_WD, SRD_GW, SRD_OUT, SRD_WS, SRD_DBG = \
    ['s[%d:%d]' % (8 + 4 * i, 11 + 4 * i) for i in range(11)]
sDP = (52, 53)

def prologue(a, nwg=256):
    if getattr(a, 'stamps', False) and getattr(a, 'first', False): a('s_memrealtime s[94:95]')
    a(f'''s_cmp_ge_u32 s2, {nwg}
          s_cbranch_scc1 L_end_{a.kname}
          s_load_dwordx16 s[56:71], s[0:1], 0
          s_load_dwordx8 s[72:79], s[0:1], 64
          s_load_dwordx4 s[80:83], s[0:1], 96
          v_lshrrev_b32 v1, 6, v0
          s_and_b32 {sXCD}, s2, 7
          v_readfirstlane_b32 {sW}, v1
          s_lshr_b32 {sJ}, s2, 3
          v_and_b32 v0, 63, v0
          s_waitcnt lgkmcnt(0)''')
    def srd(base, lo, size):
        a(f'''s_mov_b32 s{base}, s{lo}
              s_mov_b32 s{base+1}, s{lo+1}
              s_mov_b32 s{base+2}, {size}
              s_mov_b32 s{base+3}, 0x20000''')
    srd(8, 56, S*D*2); srd(12, 58, S*D*2); srd(16, 60, S*D*2); srd(20, 62, D*8); srd(24, 64, D*S*2)
    a(f'''s_cmp_lt_u32 {sW}, 2
          s_cselect_b32 s28, s70, s72
          s_cselect_b32 s29, s71, s73
          s_mov_b32 s30, {D*F*2}
          s_mov_b32 s31, 0x20000''')
    srd(32, 74, F*D*2); srd(36, 76, D*2); srd(40, 78, S*D*2); srd(44, 82, WS_SIZE); srd(48, 80, 256)
    a('s_mov_b32 s52, s66\ns_mov_b32 s53, s67')

def gate_rows(a, srow, vt, st, sc=''):
    q0, q1, gw, ad, z0, z1 = vt, vt+4, vt+8, vt+12, vt+13, vt+14
    a(f'''s_lshl_b32 s{st}, {sW}, 1
          s_add_u32 s{st}, s{st}, {srow}
          s_lshl_b32 s{st+1}, s{st}, 10
          v_lshlrev_b32 v{ad}, 4, v0
          buffer_load_dwordx4 v[{gw}:{gw+3}], v{ad}, {SRD_GW}, 0 offen
          buffer_load_dwordx4 v[{q0}:{q0+3}], v{ad}, {SRD_Q}, s{st+1} offen
          buffer_load_dwordx4 v[{q1}:{q1+3}], v{ad}, {SRD_Q}, s{st+1} offen offset:1024''')
    for i in range(4):
        a(f'v_dot2_f32_bf16 v{z0}, v{q0+i}, v{gw+i}, ' + ('0' if i == 0 else f'v{z0}'))
        a(f'v_dot2_f32_bf16 v{z1}, v{q1+i}, v{gw+i}, ' + ('0' if i == 0 else f'v{z1}'))
    for r in (8, 4, 2, 1):
        a(f'v_add_f32_dpp v{z0}, v{z0}, v{z0} row_ror:{r} row_mask:0xf bank_mask:0xf')
        a(f'v_add_f32_dpp v{z1}, v{z1}, v{z1} row_ror:{r} row_mask:0xf bank_mask:0xf')
    a(f'''v_permlane16_swap_b32 v{z0}, v{z1}
          v_add_f32 v{z0}, v{z0}, v{z1}
          v_mov_b32 v{z1}, v{z0}
          v_permlane32_swap_b32 v{z0}, v{z1}
          v_add_f32 v{z0}, v{z0}, v{z1}
          v_cvt_pk_bf16_f32 v{z0}, v{z0}, v{z0}
          v_and_b32 v{z0}, 0xffff0000, v{z0}
          v_mul_f32 v{z0}, 0xbfb8aa3b, v{z0}
          v_exp_f32 v{z0}, v{z0}
          v_add_f32 v{z0}, 1.0, v{z0}
          v_rcp_f32 v{z0}, v{z0}
          v_cvt_pk_bf16_f32 v{z0}, v{z0}, v{z0}
          v_and_b32 v{q0}, 0xffff0000, v{z0}
          v_sub_f32 v{z0}, 1.0, v{q0}
          v_cvt_pk_bf16_f32 v{z0}, v{z0}, v{z0}
          v_and_b32 v{q0+1}, 0xffff0000, v{z0}
          v_lshrrev_b32 v{ad}, 1, v0
          s_lshl_b32 s{st}, s{st}, 3
          s_add_u32 s{st}, s{st}, {WS_G}
          s_mov_b64 exec, 0x10001
          buffer_store_dwordx2 v[{q0}:{q0+1}], v{ad}, {SRD_WS}, s{st} offen {sc}
          s_mov_b64 exec, -1''', tag='gst')

def p0(a, lds, vt, st, sc=''):
    KB, VB, TB = lds, lds + 9*1024, lds + 17*1024
    ko, kh, sh, tmp = vt, vt+1, vt+2, vt+4
    P = vt + 6
    Vv = vt + 16
    Q = vt + 24
    R = vt + 34
    O = vt + 50
    a(f'''v_lshrrev_b32 v{tmp}, 3, v0
          v_lshlrev_b32 v{tmp}, 10, v{tmp}
          v_and_b32 v{ko}, 7, v0
          v_lshl_add_u32 v{ko}, v{ko}, 4, v{tmp}
          s_lshl_b32 s{st}, {sJ}, 16
          s_lshl_b32 s{st+1}, {sXCD}, 7
          s_add_u32 s{st}, s{st}, s{st+1}
          v_add_u32 v{ko}, s{st}, v{ko}
          v_subrev_u32 v{kh}, 8192, v{ko}
          s_cmp_lg_u32 {sW}, 0''')
    L = a.newlabel('L_nohalo')
    a(f'''s_cbranch_scc1 {L}
          s_mov_b32 m0, {KB}
          buffer_load_dwordx4 v{kh}, {SRD_K}, 0 offen lds''', tag='p0dma')
    a.label(L)
    a(f'''s_lshl_b32 s{st}, {sW}, 13
          s_add_u32 s{st+1}, s{st}, 32768
          s_lshl_b32 s{st+2}, {sW}, 10
          v_and_b32 v{tmp}, 15, v0
          v_lshlrev_b32 v{tmp}, 3, v{tmp}
          s_lshl_b32 s{st+3}, {sXCD}, 9
          s_lshl_b32 s{st+4}, {sW}, 7
          s_add_u32 s{st+3}, s{st+3}, s{st+4}''')
    for srd, base in ((SRD_K, KB + 1024), (SRD_V, VB)):
        for jj in range(2):
            a(f'''s_add_u32 m0, s{st+2}, {base + jj*4096}
                  buffer_load_dwordx4 v{ko}, {srd}, s{st+jj} offen lds''', tag='p0dma')
    a(f'''buffer_load_dwordx2 v[{sh}:{sh+1}], v{tmp}, {SRD_SH}, s{st+3} offen''')
    a(f'''v_lshrrev_b32 v{tmp}, 4, v0
          v_lshlrev_b32 v{tmp}, 11, v{tmp}
          v_bfe_u32 v{tmp+1}, v0, 2, 2
          v_lshl_add_u32 v{tmp}, v{tmp+1}, 7, v{tmp}
          v_and_b32 v{tmp+1}, 3, v0
          v_lshl_add_u32 v{tmp}, v{tmp+1}, 3, v{tmp}
          s_lshl_b32 s{st}, {sW}, 5
          s_add_u32 s{st}, s{st}, {lds}
          v_add_u32 v{tmp}, s{st}, v{tmp}''')
    a.wait_vm('p0dma')
    a('s_barrier')
    for i in range(5):
        a(f'ds_read_b64_tr_b16 v[{P+2*i}:{P+2*i+1}], v{tmp} offset:{512 + 512*i}')
    for i in range(4):
        a(f'ds_read_b64_tr_b16 v[{Vv+2*i}:{Vv+2*i+1}], v{tmp} offset:{9*1024 + 512*i}')
    a(f'''v_alignbit_b32 v{sh}, v{sh}, v{sh}, 16
          v_alignbit_b32 v{sh+1}, v{sh+1}, v{sh+1}, 16''')
    for i in range(1, 10):
        a(f'v_alignbit_b32 v{Q+i-1}, v{P+i}, v{P+i-1}, 16')
    for i in range(8):
        a(f'v_dot2_f32_bf16 v{R+2*i}, v{Q+i+1}, v{sh}, 0')
        a(f'v_dot2_f32_bf16 v{R+2*i+1}, v{P+i+2}, v{sh}, 0')
    for i in range(8):
        a(f'v_dot2_f32_bf16 v{R+2*i}, v{Q+i}, v{sh+1}, v{R+2*i}')
        a(f'v_dot2_f32_bf16 v{R+2*i+1}, v{P+i+1}, v{sh+1}, v{R+2*i+1}')
    for i in range(8):
        a(f'''v_lshlrev_b32 v{Q}, 16, v{Vv+i}
              v_and_b32 v{Vv+i}, 0xffff0000, v{Vv+i}
              v_mul_f32 v{R+2*i}, v{R+2*i}, v{Q}
              v_mul_f32 v{R+2*i+1}, v{R+2*i+1}, v{Vv+i}''')
    for j in range(2):
        for d in range(4):
            a(f'v_cvt_pk_bf16_f32 v{O+4*j+d}, v{R+8*j+7-2*d}, v{R+8*j+6-2*d}')
    a(f'''v_and_b32 v{ko}, 15, v0
          v_mul_u32_u24 v{ko}, 144, v{ko}
          v_lshrrev_b32 v{kh}, 4, v0
          v_lshl_add_u32 v{ko}, v{kh}, 5, v{ko}
          s_mul_i32 s{st}, {sW}, 2304
          s_add_u32 s{st}, s{st}, {TB}
          v_add_u32 v{ko}, s{st}, v{ko}
          ds_write_b128 v{ko}, v[{O}:{O+3}]
          ds_write_b128 v{ko}, v[{O+4}:{O+7}] offset:16
          v_lshrrev_b32 v{kh}, 3, v0
          v_mul_u32_u24 v{tmp}, 144, v{kh}
          v_and_b32 v{tmp+1}, 7, v0
          v_lshl_add_u32 v{tmp}, v{tmp+1}, 4, v{tmp}
          v_add_u32 v{tmp}, s{st}, v{tmp}
          ds_read_b128 v[{R}:{R+3}], v{tmp}
          ds_read_b128 v[{R+4}:{R+7}], v{tmp} offset:{8*144}
          v_lshlrev_b32 v{kh}, 12, v{kh}
          v_lshl_add_u32 v{kh}, v{tmp+1}, 4, v{kh}
          s_lshl_b32 s{st}, {sXCD}, 18
          s_lshl_b32 s{st+1}, {sW}, 16
          s_add_u32 s{st}, s{st}, s{st+1}
          s_lshl_b32 s{st+1}, {sJ}, 7
          s_add_u32 s{st}, s{st}, s{st+1}
          s_add_u32 s{st}, s{st}, {WS_KVT}
          s_add_u32 s{st+1}, s{st}, 32768''')
    a(f'''buffer_store_dwordx4 v[{R}:{R+3}], v{kh}, {SRD_WS}, s{st} offen {sc}
          buffer_store_dwordx4 v[{R+4}:{R+7}], v{kh}, {SRD_WS}, s{st+1} offen {sc}''', tag='kvst')

G1_XS = 16384
G1_WB = 49152
G1_WS = 28928
G1_UP = 14464
G1_END = G1_WB + 3*G1_WS

class G1:
    ACC = 16
    XR = 128
    WR = 132
    XD = 134
    WD = 138
    T = 146
    sRB, sFS, sROT, sXO, sWO, sM = 's54', 's55', 's84', 's85', 's86', 's87'
    sXC, sWC = 's88', 's89'

def g1_setup(a, rot=True):
    g = G1; T = g.T
    a(f'''s_and_b32 {g.sRB}, {sXCD}, 1
          s_lshl_b32 {g.sRB}, {g.sRB}, 3
          s_and_b32 s3, {sJ}, 7
          s_add_u32 {g.sRB}, {g.sRB}, s3
          s_lshr_b32 {g.sFS}, {sXCD}, 1
          s_lshl_b32 {g.sFS}, {g.sFS}, 2
          s_lshr_b32 s3, {sJ}, 3
          s_add_u32 {g.sFS}, {g.sFS}, s3''')
    if rot:
        a(f's_lshl_b32 {g.sROT}, {g.sFS}, 1\ns_add_u32 {g.sROT}, {g.sROT}, {g.sRB}')
    else:
        a(f's_mov_b32 {g.sROT}, 0')
    a(f'''s_lshl_b32 {g.sXO}, {g.sRB}, 17
          s_lshl_b32 s3, {sW}, 15
          s_add_u32 {g.sXO}, {g.sXO}, s3
          s_mul_i32 {g.sWO}, {g.sFS}, 224
          s_and_b32 s3, {sW}, 1
          s_mul_i32 s3, s3, {32*3584}
          s_add_u32 {g.sWO}, {g.sWO}, s3''')
    a(f'''v_lshrrev_b32 v{T}, 3, v0
          v_lshlrev_b32 v{T}, 10, v{T}
          v_lshrrev_b32 v{T+1}, 4, v0
          v_and_b32 v{T+2}, 7, v0
          v_xor_b32 v{T+1}, v{T+1}, v{T+2}
          v_lshl_add_u32 v{g.XD}, v{T+1}, 4, v{T}
          v_xor_b32 v{g.XD+1}, 64, v{g.XD}
          v_add_u32 v{g.XD+1}, {8192-1024}, v{g.XD+1}
          v_add_u32 v{g.XD+2}, {2*(8192-1024)}, v{g.XD}
          v_add_u32 v{g.XD+3}, {2*(8192-1024)}, v{g.XD+1}
          s_mov_b32 s3, {(2**32 + 13)//14}''')
    for u in range(7):
        a(f'''v_add_u32 v{T}, {64*u}, v0
              v_mul_hi_u32 v{T+1}, v{T}, s3
              v_mul_u32_u24 v{T+1}, {3584-224}, v{T+1}
              v_lshl_add_u32 v{g.WD+u}, v{T}, 4, v{T+1}''')
        if u % 4: a(f'v_subrev_u32 v{g.WD+u}, {1024*(u%4)}, v{g.WD+u}')
    a(f'''v_and_b32 v{T}, 31, v0
          v_lshrrev_b32 v{T+1}, 5, v0
          v_bfe_u32 v{T+2}, v0, 1, 3
          v_xor_b32 v{T+1}, v{T+1}, v{T+2}
          v_lshlrev_b32 v{T}, 7, v{T}
          v_lshl_add_u32 v{T}, v{T+1}, 4, v{T}
          s_lshl_b32 s3, {sW}, 12
          v_add_u32 v{g.XR}, s3, v{T}
          v_xor_b32 v{g.XR+1}, 32, v{g.XR}
          v_xor_b32 v{g.XR+2}, 64, v{g.XR}
          v_xor_b32 v{g.XR+3}, 96, v{g.XR}''')
    a(f'''v_bfe_u32 v{T}, v0, 4, 1
          v_mul_u32_u24 v{T}, {G1_UP}, v{T}
          v_lshrrev_b32 v{T+1}, 5, v0
          v_lshlrev_b32 v{T+1}, 3, v{T+1}
          v_bfe_u32 v{T+2}, v0, 2, 2
          v_add_u32 v{T+1}, v{T+1}, v{T+2}
          v_mul_u32_u24 v{T+1}, 224, v{T+1}
          v_and_b32 v{T+2}, 3, v0
          v_lshl_add_u32 v{T+1}, v{T+2}, 3, v{T+1}
          v_add_u32 v{T}, v{T}, v{T+1}
          v_add_u32 v{g.WR}, {G1_WB}, v{T}
          v_add_u32 v{g.WR+1}, {G1_WB + 2*G1_WS}, v{T}''')
    a(f'''s_lshr_b32 s3, {sW}, 1
          s_mul_i32 {g.sM}, s3, {G1_UP}
          s_and_b32 s3, {sW}, 1
          s_mul_i32 s3, s3, 7168
          s_add_u32 {g.sM}, {g.sM}, s3
          s_add_u32 {g.sM}, {g.sM}, {G1_WB}
          s_lshl_b32 s90, {sW}, 12''')

def g1_dma_items(c):
    g = G1; slot = c % 3; tag = f'g1dma{c}'
    it = []
    it.append([(f's_add_u32 s3, {g.sROT}, {c}', None), ('s_and_b32 s3, s3, 7', None)])
    it.append([(f's_lshl_b32 {g.sXC}, s3, 7', None), (f's_mul_i32 {g.sWC}, s3, {64*3584}', None)])
    it.append([(f's_add_u32 {g.sXC}, {g.sXC}, {g.sXO}', None), (f's_add_u32 {g.sWC}, {g.sWC}, {g.sWO}', None)])
    for i in range(4):
        grp = []
        if i == 0: grp.append((f's_add_u32 m0, s90, {slot*G1_XS}', None))
        grp.append((f'buffer_load_dwordx4 v{g.XD+i}, {SRD_Q}, {g.sXC} offen offset:{1024*i} lds', tag))
        it.append(grp)
    for u in range(7):
        grp = []
        if u % 4 == 0: grp.append((f's_add_u32 m0, {g.sM}, {slot*G1_WS + 1024*u}', None))
        grp.append((f'buffer_load_dwordx4 v{g.WD+u}, {SRD_W}, {g.sWC} offen offset:{1024*(u%4)} lds', tag))
        it.append(grp)
    return it

def g1_reads(k):
    g = G1; c, ks = k >> 2, k & 3; slot = c % 3; buf = (k & 1)*32
    r = [f'ds_read_b128 a[{buf+28}:{buf+31}], v{g.XR+ks} offset:{slot*G1_XS}']
    for t in range(7):
        for m in range(2):
            off = (16*ks + 4*m)*224 + 32*t + (G1_WS if slot == 1 else 0)
            r.append(f'ds_read_b64_tr_b16 a[{buf+4*t+2*m}:{buf+4*t+2*m+1}], v{g.WR + (1 if slot == 2 else 0)} offset:{off}')
    return r

def g1_mfma(k, t):
    g = G1; buf = (k & 1)*32; A = g.ACC + 16*t
    return f'v_mfma_f32_32x32x16_bf16 v[{A}:{A+15}], a[{buf+4*t}:{buf+4*t+3}], a[{buf+28}:{buf+31}], ' + ('0' if k == 0 else f'v[{A}:{A+15}]')

def g1_main(a, sc=''):
    g = G1
    for c in range(3):
        for grp in g1_dma_items(c):
            for txt, tag in grp: a(txt, tag)
    stamp(a, 8)
    a.wait_vm('g1dma0')
    a('s_barrier')
    stamp(a, 9)
    for r in g1_reads(0): a(r)
    pend = []
    for k in range(32):
        c, ks = k >> 2, k & 3
        reads = g1_reads(k+1) if k < 31 else []
        gaps = [[] for _ in range(7)]
        first = 0
        if ks == 3 and k < 31:
            gaps[0] = ['BAR']; first = 1
            if c + 3 < 8 and not a.opts.get('nodma'): pend = g1_dma_items(c + 3)
        if a.opts.get('noreads'): reads = []
        for i, r in enumerate(reads): gaps[first + i//3].append((r, None))
        free = [gp for gp in range(7) if gp >= first + 5] if reads else list(range(7))
        nper = 2 if len(free) >= 2 else 3
        for gp in free:
            for _ in range(nper):
                if pend: gaps[gp] += pend.pop(0)
        for t in range(7):
            a(g1_mfma(k, t))
            for it in gaps[t]:
                if it == 'BAR' and a.opts.get('nobar'): pass
                elif it == 'BAR':
                    a.wait_vm(f'g1dma{c+1}')
                    a('s_waitcnt lgkmcnt(0)')
                    a('s_barrier')
                    if c in (0, 2, 4, 6): stamp(a, 10 + c//2)
                else: a(it[0], it[1])
    assert not pend
    stamp(a, 14)
    T = g.T
    a(f'''s_lshl_b32 s3, {g.sRB}, 2
          s_add_u32 s3, s3, {sW}
          s_mul_i32 s3, s3, 112
          s_mul_i32 s54, {g.sFS}, 7
          s_add_u32 s3, s3, s54
          s_lshl_b32 s3, s3, 10
          s_add_u32 s3, s3, {WS_H}
          s_add_u32 s54, s3, 4096
          v_lshlrev_b32 v{T}, 4, v0''')
    for t in range(7):
        A = g.ACC + 16*t
        for j in range(8): a(f'v_max_f32 v{A+j}, 0, v{A+j}')
        for j in range(0, 8, 2): a(f'v_pk_mul_f32 v[{A+j}:{A+j+1}], v[{A+j}:{A+j+1}], v[{A+8+j}:{A+9+j}]')
        for j in range(4): a(f'v_cvt_pk_bf16_f32 v{A+8+j}, v{A+2*j}, v{A+2*j+1}')
        a(f'buffer_store_dwordx4 v[{A+8}:{A+11}], v{T}, {SRD_WS}, {"s3" if t < 4 else "s54"} offen offset:{1024*(t%4)} {sc}', tag='hst')

CV_U = 4608
CV_KS = 4160
CV_K = 4*CV_KS
class CV:
    ACC = 16
    T = 48
    UB = 0
    AF = 128
    NA = 8

def conv(a, lds, sc=''):
    cv = CV; T = cv.T
    UL = lds; KL = lds + 2*CV_U; RL = KL + 2*CV_K
    sCH, sP, sC, sD, sU, sK = 's54', 's55', 's84', 's85', 's86', 's87'
    a(f'''s_lshr_b32 {sCH}, {sW}, 1
          s_and_b32 {sP}, {sW}, 1
          s_lshl_b32 {sC}, {sXCD}, 6
          s_lshl_b32 s3, {sJ}, 1
          s_add_u32 {sC}, {sC}, s3
          s_lshl_b32 s88, {sC}, 1
          s_add_u32 {sC}, {sC}, {sCH}
          s_load_dword {sD}, s[{sDP[0]}:{sDP[1]}], s88
          s_mul_i32 {sU}, {sCH}, {CV_U}
          s_add_u32 {sU}, {sU}, {UL}
          s_mul_i32 {sK}, {sCH}, {CV_K}
          s_add_u32 {sK}, {sK}, {KL}
          s_lshl_b32 s89, {sC}, 12
          s_lshl_b32 s3, {sP}, 11
          s_add_u32 s90, s89, s3
          v_lshlrev_b32 v{T}, 4, v0''')
    a(f'''s_add_u32 s91, s90, {WS_KVT}
          s_add_u32 s3, s3, {sU}
          s_add_u32 m0, s3, 512
          buffer_load_dwordx4 v{T}, {SRD_WS}, s91 offen {sc} lds
          buffer_load_dwordx4 v{T}, {SRD_WS}, s91 offen offset:1024 {sc} lds''', tag='udma')
    KA = T + 4
    a(f'''s_lshl_b32 s3, {sP}, 10
          s_add_u32 s89, s89, s3''')
    for r in range(2):
        a(f'''buffer_load_dwordx4 v[{KA+8*r}:{KA+8*r+3}], v{T}, {SRD_SK}, s89 offen offset:{2048*r}
              buffer_load_dwordx4 v[{KA+8*r+4}:{KA+8*r+7}], v{T}, {SRD_SK}, s89 offen offset:{2048*r+16}''')
    Z = T + 20
    a(f'''v_mov_b32 v{Z}, 0
          v_mov_b32 v{Z+1}, 0
          v_mov_b32 v{Z+2}, 0
          v_mov_b32 v{Z+3}, 0
          v_add_u32 v{T+1}, {sU}, v{T}
          v_subrev_u32 v{T+2}, 32, v0
          v_lshrrev_b32 v{T+3}, 1, v{T+2}
          v_mul_u32_u24 v{T+3}, {CV_KS}, v{T+3}
          v_and_b32 v{T+2}, 1, v0
          v_lshl_add_u32 v{T+3}, v{T+2}, 4, v{T+3}
          v_add_u32 v{T+3}, {sK}, v{T+3}
          v_cmp_gt_u32 vcc, 32, v0
          v_cndmask_b32 v{T+1}, v{T+3}, v{T+1}, vcc
          s_mov_b32 exec_hi, 0xff
          s_cmp_lg_u32 {sP}, 0''')
    L = a.newlabel('L_cvz')
    a(f'''s_cbranch_scc1 {L}
          ds_write_b128 v{T+1}, v[{Z}:{Z+3}]''')
    a.label(L)
    a('s_mov_b64 exec, -1')
    a(f'''s_lshl_b32 s3, {sP}, 10
          s_add_u32 s3, s3, {sK}
          v_add_u32 v{T+1}, s3, v{T}''')
    C1, C2, C3 = T + 24, T + 28, T + 32
    for r in range(2):
        A = KA + 8*r
        for i in range(4): a(f'v_alignbit_b32 v{C1+i}, v{A+i+1}, v{A+i}, 16')
        for i in range(4): a(f'v_mov_b32 v{C2+i}, v{A+i+1}')
        for i in range(3): a(f'v_mov_b32 v{C3+i}, v{C1+i+1}')
        a(f'v_alignbit_b32 v{C3+3}, v{A+5}, v{A+4}, 16')
        off = 32 + 2048*r
        a(f'''ds_write_b128 v{T+1}, v[{A}:{A+3}] offset:{off}
              ds_write_b128 v{T+1}, v[{C1}:{C1+3}] offset:{off + CV_KS}
              ds_write_b128 v{T+1}, v[{C2}:{C2+3}] offset:{off + 2*CV_KS}
              ds_write_b128 v{T+1}, v[{C3}:{C3+3}] offset:{off + 3*CV_KS}''')
        if r == 0:
            L = a.newlabel('L_cvh')
            a(f'''v_lshlrev_b32 v{Z}, 16, v{A}
                  s_cmp_lg_u32 {sP}, 0
                  s_cbranch_scc1 {L}
                  s_mov_b64 exec, 1
                  ds_write_b32 v{T+1}, v{Z} offset:{CV_KS + 28}
                  ds_write_b32 v{T+1}, v{A} offset:{2*CV_KS + 28}
                  ds_write_b32 v{T+1}, v{Z} offset:{3*CV_KS + 24}
                  ds_write_b32 v{T+1}, v{C1} offset:{3*CV_KS + 28}
                  s_mov_b64 exec, -1''')
            a.label(L)
    vA, vU, vDt = T + 1, T + 2, T + 3
    a(f'''v_and_b32 v{Z}, 15, v0
          v_lshrrev_b32 v{Z+1}, 4, v0
          v_add_u32 v{Z+2}, 1, v{Z}
          v_and_b32 v{Z+3}, 3, v{Z+2}
          v_mul_u32_u24 v{vA}, {CV_KS}, v{Z+3}
          v_and_b32 v{Z+2}, 28, v{Z+2}
          v_lshlrev_b32 v{Z+3}, 3, v{Z+1}
          v_sub_u32 v{Z+2}, v{Z+2}, v{Z+3}
          v_add_u32 v{Z+2}, 24, v{Z+2}
          v_lshl_add_u32 v{vA}, v{Z+2}, 1, v{vA}
          s_lshl_b32 s3, {sP}, 6
          s_add_u32 s88, s3, {sK}
          v_add_u32 v{vA}, s88, v{vA}
          v_lshl_add_u32 v{vU}, v{Z}, 1, v{Z+1}
          v_lshlrev_b32 v{vU}, 4, v{vU}
          s_sub_u32 s88, {sU}, s3
          s_add_u32 s88, s88, {30*16 - 384}
          v_add_u32 v{vU}, s88, v{vU}
          v_lshrrev_b32 v{Z+2}, 1, v{Z+1}
          v_lshl_add_u32 v{Z+2}, v{Z}, 1, v{Z+2}
          v_lshlrev_b32 v{vDt}, 4, v{Z+2}
          v_and_b32 v{Z+2}, 1, v{Z+1}
          v_lshlrev_b32 v{Z+2}, 3, v{Z+2}
          v_sub_u32 v{vDt}, v{vDt}, v{Z+2}
          s_lshl_b32 s3, {sP}, 11
          s_add_u32 s88, s3, {sU}
          s_add_u32 s88, s88, {512 + 8}
          v_add_u32 v{vDt}, s88, v{vDt}''')
    a.wait_vm('udma')
    a('s_waitcnt lgkmcnt(0)')
    a(f'''s_lshr_b32 s3, {sD}, 16
          s_cmp_eq_u32 {sCH}, 0
          s_cselect_b32 {sD}, {sD}, s3
          s_lshl_b32 {sD}, {sD}, 16
          s_barrier''')
    def rdA(e):
        b = cv.AF + 4*(e % cv.NA)
        return [f'ds_read_b64 a[{b}:{b+1}], v{vA} offset:{128*e}', f'ds_read_b64 a[{b+2}:{b+3}], v{vA} offset:{128*e+8}']
    def rdU(mu):
        b = cv.UB + 4*(mu + 3)
        return f'ds_read_b128 a[{b}:{b+3}], v{vU} offset:{128*(mu+3)}'
    LA = 3
    for e in range(LA):
        if e == 1:
            for n in range(8): a(rdU(4*n))
        for r in rdA(e): a(r)
    for e in range(32):
        fill = []
        if e + LA < 32: fill += rdA(e + LA)
        if e < 3: fill = [rdU(4*n - (e+1)) for n in range(8)] + fill
        ns = list(range(e >> 2, 8))
        per = -(-len(fill) // len(ns))
        for n in ns:
            b = cv.AF + 4*(e % cv.NA); u = cv.UB + 4*(4*n - e + 3); A = cv.ACC + 4*n
            a(f'v_mfma_f32_16x16x32_bf16 v[{A}:{A+3}], a[{b}:{b+3}], a[{u}:{u+3}], ' + ('0' if e == 0 else f'v[{A}:{A+3}]'))
            for _ in range(per):
                if fill: a(fill.pop(0))
    X = T + 4
    U2 = T + 20
    a(f'''s_lshl_b32 s3, {sW}, 12
          s_add_u32 s88, s3, {RL}
          v_add_u32 v{Z+8}, s88, v{T}
          s_xor_b32 s88, s3, 4096
          s_add_u32 s88, s88, {RL}
          v_add_u32 v{Z+9}, s88, v{T}''')
    for i in range(4): a(f'ds_read_b64 v[{U2+2*i}:{U2+2*i+1}], v{vDt} offset:{512*i}')
    L1 = a.newlabel('L_cvp1'); L2 = a.newlabel('L_cvp2')
    a(f's_nop 7\ns_cmp_lg_u32 {sP}, 0\ns_cbranch_scc1 {L1}')
    for i in range(4): a(f'ds_write_b128 v{Z+8}, v[{cv.ACC+16+4*i}:{cv.ACC+19+4*i}] offset:{1024*i}')
    a(f's_branch {L2}')
    a.label(L1)
    for i in range(4): a(f'ds_write_b128 v{Z+8}, v[{cv.ACC+4*i}:{cv.ACC+3+4*i}] offset:{1024*i}')
    for i in range(16): a(f'v_mov_b32 v{cv.ACC+i}, v{cv.ACC+16+i}')
    a.label(L2)
    a('s_waitcnt lgkmcnt(0)\ns_barrier')
    for i in range(4): a(f'ds_read_b128 v[{X+4*i}:{X+4*i+3}], v{Z+9} offset:{1024*i}')
    A = cv.ACC; E = cv.ACC + 16
    for i in range(4):
        a(f'''v_and_b32 v{E+4*i}, 0xffff0000, v{U2+2*i+1}
              v_lshlrev_b32 v{E+4*i+1}, 16, v{U2+2*i+1}
              v_and_b32 v{E+4*i+2}, 0xffff0000, v{U2+2*i}
              v_lshlrev_b32 v{E+4*i+3}, 16, v{U2+2*i}''')
    for i in range(16): a(f'v_fmac_f32 v{A+i}, {sD}, v{E+i}')
    for i in range(0, 16, 2): a(f'v_pk_add_f32 v[{A+i}:{A+i+1}], v[{A+i}:{A+i+1}], v[{X+i}:{X+i+1}]')
    for i in range(8): a(f'v_cvt_pk_bf16_f32 v{E+i}, v{A+2*i}, v{A+2*i+1}')
    a(f'''v_bfe_u32 v{X}, v0, 4, 1
          v_bfe_u32 v{X+1}, v0, 2, 2
          v_lshl_add_u32 v{X}, v{X}, 2, v{X+1}
          v_lshlrev_b32 v{X}, 7, v{X}
          v_lshrrev_b32 v{X+1}, 5, v0
          v_and_b32 v{X+2}, 3, v0
          v_lshl_add_u32 v{X+1}, v{X+1}, 2, v{X+2}
          v_lshl_add_u32 v{X}, v{X+1}, 4, v{X}
          s_add_u32 s90, s90, {WS_Y}''')
    for i in range(2):
        a(f'''v_permlane16_swap_b32 v{E+4*i}, v{E+4*i+2}
              v_permlane16_swap_b32 v{E+4*i+1}, v{E+4*i+3}''')
        a(f'buffer_store_dwordx4 v[{E+4*i}:{E+4*i+3}], v{X}, {SRD_WS}, s90 offen offset:{1024*i} {sc}', tag='yst')

class G2:
    ACC = 16
    HB = 80
    NH = 12
    T = 176
    AF = 0
    NA = 4
    NW = 12

def g2(a, lds, sc=''):
    q = G2; T = q.T
    WL = lds
    QL = lds + 4*q.NW*2048
    YL = QL + 8192
    RL = lds
    sSB, sDB, sWD, sH0, sH1, sM = 's54', 's55', 's84', 's85', 's86', 's87'
    vWD, vL16, vA0, vA1 = T, T+1, T+2, T+3
    a(f'''s_lshl_b32 {sSB}, {sXCD}, 2
          s_and_b32 s3, {sJ}, 3
          s_add_u32 {sSB}, {sSB}, s3
          s_lshr_b32 {sDB}, {sJ}, 2
          s_mul_i32 {sWD}, {sW}, {448*1024}
          s_lshl_b32 s3, {sDB}, 7
          s_add_u32 {sWD}, {sWD}, s3
          s_lshl_b32 s3, {sSB}, 1
          s_and_b32 s88, {sW}, 1
          s_add_u32 s89, s3, s88
          s_xor_b32 s88, s88, 1
          s_add_u32 s88, s3, s88
          s_mul_i32 {sH0}, s89, {112*1024}
          s_mul_i32 {sH1}, s88, {112*1024}
          s_mul_i32 s3, {sW}, {28*1024}
          s_add_u32 s3, s3, {WS_H}
          s_add_u32 {sH0}, {sH0}, s3
          s_add_u32 {sH1}, {sH1}, s3
          s_mul_i32 {sM}, {sW}, {q.NW*2048}
          s_add_u32 {sM}, {sM}, {WL}
          v_lshlrev_b32 v{vL16}, 4, v0
          v_lshrrev_b32 v{vWD}, 3, v0
          v_lshlrev_b32 v{vWD}, 10, v{vWD}
          v_bfe_u32 v{T+4}, v0, 4, 1
          v_lshlrev_b32 v{T+4}, 2, v{T+4}
          v_and_b32 v{T+5}, 7, v0
          v_xor_b32 v{T+4}, v{T+4}, v{T+5}
          v_lshl_add_u32 v{vWD}, v{T+4}, 4, v{vWD}
          v_add_u32 v{T+6}, {8192-1024}, v{vWD}''')
    vWD1 = T + 6
    a(f'''v_lshrrev_b32 v{T+4}, 5, v0
          v_bfe_u32 v{T+5}, v0, 2, 2
          v_lshl_add_u32 v{T+4}, v{T+4}, 2, v{T+5}
          v_lshlrev_b32 v{vA0}, 7, v{T+4}
          v_bfe_u32 v{T+4}, v0, 3, 1
          s_lshr_b32 s3, {sW}, 1
          v_xor_b32 v{T+4}, s3, v{T+4}
          v_lshl_add_u32 v{vA0}, v{T+4}, 6, v{vA0}
          v_bfe_u32 v{T+4}, v0, 4, 1
          v_lshl_add_u32 v{vA0}, v{T+4}, 5, v{vA0}
          v_and_b32 v{T+4}, 3, v0
          v_lshl_add_u32 v{vA0}, v{T+4}, 3, v{vA0}
          v_add_u32 v{vA0}, {sM}, v{vA0}
          v_xor_b32 v{vA1}, 64, v{vA0}''')
    def dmaW(ft):
        sl = ft % q.NW
        return [(f's_add_u32 m0, {sM}, {sl*2048}', None), (f's_add_u32 s3, {sWD}, {ft*16384}', None),
                (f'buffer_load_dwordx4 v{vWD}, {SRD_WD}, s3 offen lds', f'wd{ft}'),
                (f'buffer_load_dwordx4 v{vWD1}, {SRD_WD}, s3 offen offset:1024 lds', f'wd{ft}')]
    def ldH(ft):
        b = q.HB + 8*(ft % q.NH)
        r = []
        if ft % 4 == 0 and ft: r += [(f's_add_u32 {sH0}, {sH0}, 4096', None), (f's_add_u32 {sH1}, {sH1}, 4096', None)]
        r += [(f'buffer_load_dwordx4 v[{b}:{b+3}], v{vL16}, {SRD_WS}, {sH0} offen offset:{1024*(ft%4)} {sc}', None),
              (f'buffer_load_dwordx4 v[{b+4}:{b+7}], v{vL16}, {SRD_WS}, {sH1} offen offset:{1024*(ft%4)} {sc}', None)]
        return r
    def rdA(ft):
        sl = ft % q.NW; b = q.AF + 8*(ft % q.NA)
        return [(f'ds_read_b64_tr_b16 a[{b+4*al+2*m}:{b+4*al+2*m+1}], v{vA0+al} offset:{sl*2048 + 1024*m}', None)
                for al in range(2) for m in range(2)]
    vQ = T + 7; vY = T + 8
    a(f'''v_lshrrev_b32 v{T+4}, 3, v0
          v_and_b32 v{T+5}, 7, v0
          v_lshlrev_b32 v{vQ}, 10, v{T+4}
          v_lshl_add_u32 v{vQ}, v{T+5}, 4, v{vQ}
          v_lshlrev_b32 v{vY}, 12, v{T+4}
          v_lshl_add_u32 v{vY}, v{T+5}, 4, v{vY}
          v_add_u32 v{T+9}, {8192-1024}, v{vQ}
          v_add_u32 v{T+10}, {32768-1024}, v{vY}
          s_lshl_b32 s88, {sSB}, 16
          s_lshl_b32 s3, {sW}, 14
          s_add_u32 s88, s88, s3
          s_lshl_b32 s3, {sDB}, 7
          s_add_u32 s88, s88, s3
          s_lshl_b32 s89, {sDB}, 18
          s_lshl_b32 s3, {sW}, 16
          s_add_u32 s89, s89, s3
          s_lshl_b32 s3, {sSB}, 7
          s_add_u32 s89, s89, s3
          s_add_u32 s89, s89, {WS_Y}
          s_lshl_b32 s90, {sW}, 11''')
    PRE = q.NW - 1
    for ft in range(PRE):
        for t, g in dmaW(ft): a(t, g)
        for t, g in ldH(ft): a(t, g)
    a(f'''s_add_u32 m0, s90, {QL}
          buffer_load_dwordx4 v{vQ}, {SRD_Q}, s88 offen lds
          buffer_load_dwordx4 v{T+9}, {SRD_Q}, s88 offen offset:1024 lds
          s_add_u32 m0, s90, {YL}
          buffer_load_dwordx4 v{vY}, {SRD_WS}, s89 offen {sc} lds
          buffer_load_dwordx4 v{T+10}, {SRD_WS}, s89 offen offset:1024 {sc} lds''', tag='qy')
    vG = T + 12
    a(f'''v_and_b32 v{T+4}, 31, v0
          v_lshlrev_b32 v{T+4}, 3, v{T+4}
          s_lshl_b32 s3, {sSB}, 1
          s_and_b32 s91, {sW}, 1
          s_add_u32 s3, s3, s91
          s_lshl_b32 s3, s3, 8
          s_add_u32 s3, s3, {WS_G}
          buffer_load_dwordx2 v[{vG}:{vG+1}], v{T+4}, {SRD_WS}, s3 offen {sc}''')
    for ft in range(2):
        a.wait_vm(f'wd{ft}')
        for t, g in rdA(ft): a(t, g)
    for ft in range(28):
        fill = []
        if ft + 2 < 28: fill += [('WAIT', ft + 2)] + rdA(ft + 2)
        late = []
        if ft + PRE < 28: late = dmaW(ft + PRE) + ldH(ft + PRE)
        b = q.AF + 8*(ft % q.NA); hb = q.HB + 8*(ft % q.NH)
        for sg in range(4):
            al, be = sg >> 1, sg & 1; A = q.ACC + 16*sg
            a(f'v_mfma_f32_32x32x16_bf16 v[{A}:{A+15}], a[{b+4*al}:{b+4*al+3}], v[{hb+4*be}:{hb+4*be+3}], ' + ('0' if ft == 0 else f'v[{A}:{A+15}]'))
            if sg == 0:
                for t, g in fill:
                    if t == 'WAIT': a.wait_vm(f'wd{g}')
                    else: a(t, g)
            if sg == 3:
                for t, g in late: a(t, g)
    a.wait_vm('qy')
    a('s_barrier')
    QV = q.HB; YV = q.HB + 8; AT = q.HB + 16; X = q.HB + 32
    a(f'''v_and_b32 v{T+4}, 31, v0
          v_lshlrev_b32 v{T+4}, 7, v{T+4}
          v_lshrrev_b32 v{T+5}, 5, v0
          v_lshl_add_u32 v{T+4}, v{T+5}, 3, v{T+4}
          s_and_b32 s3, {sW}, 1
          s_lshl_b32 s3, s3, 12
          s_lshr_b32 s88, {sW}, 1
          s_lshl_b32 s89, s88, 6
          s_add_u32 s3, s3, s89
          s_add_u32 s3, s3, {QL}
          v_add_u32 v{T+4}, s3, v{T+4}''')
    for m in range(4): a(f'ds_read_b64 v[{QV+2*m}:{QV+2*m+1}], v{T+4} offset:{16*m}')
    a(f'''v_lshrrev_b32 v{T+5}, 5, v0
          v_bfe_u32 v{T+6}, v0, 2, 2
          v_lshl_add_u32 v{T+5}, v{T+5}, 2, v{T+6}
          v_lshlrev_b32 v{T+5}, 7, v{T+5}
          v_bfe_u32 v{T+6}, v0, 1, 1
          v_lshl_add_u32 v{T+5}, v{T+6}, 6, v{T+5}
          v_bfe_u32 v{T+6}, v0, 4, 1
          v_lshl_add_u32 v{T+5}, v{T+6}, 4, v{T+5}
          v_and_b32 v{T+6}, 1, v0
          v_lshl_add_u32 v{T+5}, v{T+6}, 3, v{T+5}
          s_and_b32 s3, {sW}, 1
          s_lshl_b32 s3, s3, 5
          s_lshl_b32 s89, s88, 12
          s_add_u32 s3, s3, s89
          s_add_u32 s3, s3, {YL}
          v_add_u32 v{T+5}, s3, v{T+5}''')
    for m in range(4): a(f'ds_read_b64_tr_b16 v[{YV+2*m}:{YV+2*m+1}], v{T+5} offset:{1024*m}')
    for sg in range(1, 4):
        a(f'''s_xor_b32 s3, {sW}, {sg}
              s_lshl_b32 s3, s3, 12
              s_add_u32 s3, s3, {RL + (sg-1)*16384}
              v_add_u32 v{T+6}, s3, v{vL16}''')
        for m in range(4):
            A = q.ACC + 16*sg + 4*m
            a(f'ds_write_b128 v{T+6}, v[{A}:{A+3}] offset:{1024*m}')
    for i in range(8):
        a(f'''v_lshlrev_b32 v{AT+2*i}, 16, v{QV+i}
              v_and_b32 v{AT+2*i+1}, 0xffff0000, v{QV+i}
              v_lshlrev_b32 v{QV+i}, 16, v{YV+i}
              v_and_b32 v{YV+i}, 0xffff0000, v{YV+i}
              v_mul_f32 v{AT+2*i}, v{AT+2*i}, v{QV+i}
              v_mul_f32 v{AT+2*i+1}, v{AT+2*i+1}, v{YV+i}
              v_mul_f32 v{AT+2*i}, v{AT+2*i}, v{vG}
              v_mul_f32 v{AT+2*i+1}, v{AT+2*i+1}, v{vG}''')
    a(f'''s_lshl_b32 s3, {sW}, 12
          s_add_u32 s3, s3, {RL}
          v_add_u32 v{T+6}, s3, v{vL16}
          s_waitcnt lgkmcnt(0)
          s_barrier''')
    for sg in range(1, 4):
        for m in range(4):
            b = X + 16*(sg-1) + 4*m
            a(f'ds_read_b128 v[{b}:{b+3}], v{T+6} offset:{(sg-1)*16384 + 1024*m}')
    A = q.ACC
    for sg in range(1, 4):
        for i in range(0, 16, 2):
            b = X + 16*(sg-1) + i
            a(f'v_pk_add_f32 v[{A+i}:{A+i+1}], v[{A+i}:{A+i+1}], v[{b}:{b+1}]')
    for i in range(16): a(f'v_fmac_f32 v{AT+i}, v{A+i}, v{vG+1}')
    for i in range(8): a(f'v_cvt_pk_bf16_f32 v{A+i}, v{AT+2*i}, v{AT+2*i+1}')
    OL = QL
    a(f'''s_mul_i32 s3, {sW}, 2560
          s_add_u32 s3, s3, {OL}
          v_and_b32 v{T+4}, 31, v0
          v_mul_u32_u24 v{T+4}, 80, v{T+4}
          v_lshrrev_b32 v{T+5}, 5, v0
          v_lshl_add_u32 v{T+4}, v{T+5}, 3, v{T+4}
          v_add_u32 v{T+4}, s3, v{T+4}''')
    for m in range(4): a(f'ds_write_b64 v{T+4}, v[{A+2*m}:{A+2*m+1}] offset:{16*m}')
    a(f'''v_lshrrev_b32 v{T+5}, 2, v0
          v_mul_u32_u24 v{T+6}, 80, v{T+5}
          v_and_b32 v{T+7}, 3, v0
          v_lshl_add_u32 v{T+6}, v{T+7}, 4, v{T+6}
          v_add_u32 v{T+6}, s3, v{T+6}
          ds_read_b128 v[{X}:{X+3}], v{T+6}
          ds_read_b128 v[{X+4}:{X+7}], v{T+6} offset:{16*80}
          v_lshlrev_b32 v{T+5}, 10, v{T+5}
          v_lshl_add_u32 v{T+5}, v{T+7}, 4, v{T+5}
          s_lshl_b32 s3, {sSB}, 1
          s_add_u32 s3, s3, s91
          s_lshl_b32 s3, s3, 15
          s_lshl_b32 s89, {sDB}, 7
          s_add_u32 s3, s3, s89
          s_lshl_b32 s89, s88, 6
          s_add_u32 s3, s3, s89
          s_add_u32 s89, s3, 16384
          buffer_store_dwordx4 v[{X}:{X+3}], v{T+5}, {SRD_OUT}, s3 offen
          buffer_store_dwordx4 v[{X+4}:{X+7}], v{T+5}, {SRD_OUT}, s89 offen''')

WS_STAMP = 14 << 20
NSTAMP = 16
def stamp(a, i):
    if not getattr(a, 'stamps', False): return
    a(f"""{'s_memtime' if getattr(a, 'cyc', 0) else 's_memrealtime'} s[92:93]
          s_waitcnt lgkmcnt(0)
          v_writelane_b32 v255, s92, {i}""")
    a.smask = getattr(a, 'smask', 0) | (1 << i)
def stamp_flush(a):
    if not getattr(a, 'stamps', False): return
    a(f"""s_lshl_b32 s92, s2, 2
          s_add_u32 s92, s92, {sW}
          s_lshl_b32 s92, s92, 6
          s_add_u32 s92, s92, {WS_STAMP}
          v_lshlrev_b32 v254, 2, v0
          s_mov_b64 exec, {a.smask}
          buffer_store_dword v255, v254, {SRD_WS}, s92 offen
          s_mov_b64 exec, -1""")

def kernel_text(kname, body, vgpr, accum):
    return f'''.text
.globl {kname}
.p2align 8
.type {kname},@function
{kname}:
{body}
'''
def descriptor(kname, vgpr, accum):
    return f'''.amdhsa_kernel {kname}
  .amdhsa_next_free_vgpr {vgpr}
  .amdhsa_next_free_sgpr 102
  .amdhsa_accum_offset {accum}
  .amdhsa_group_segment_fixed_size 0
  .amdhsa_kernarg_size 112
  .amdhsa_user_sgpr_count 2
  .amdhsa_user_sgpr_kernarg_segment_ptr 1
  .amdhsa_system_sgpr_workgroup_id_x 1
  .amdhsa_float_denorm_mode_32 3
.end_amdhsa_kernel
'''

def diag_body(ia, ib, mult=10):
    return f"""    s_cmp_lg_u32 s2, 0
    s_cbranch_scc1 L_diag_end
    s_load_dwordx2 s[4:5], s[0:1], 104
    s_waitcnt lgkmcnt(0)
    s_add_u32 s4, s4, {WS_STAMP}
    s_addc_u32 s5, s5, 0
    s_load_dword s6, s[4:5], {4*ia}
    s_load_dword s7, s[4:5], {4*max(ib,0)}
    s_memrealtime s[8:9]
    s_waitcnt lgkmcnt(0)
    {'s_mov_b32 s7, s8' if ib < 0 else ''}
    s_sub_u32 s6, s7, s6
    s_min_u32 s6, s6, 10000
    s_mul_i32 s6, s6, {mult}
L_diag_loop:
    s_memrealtime s[10:11]
    s_waitcnt lgkmcnt(0)
    s_sub_u32 s10, s10, s8
    s_cmp_lt_u32 s10, s6
    s_cbranch_scc1 L_diag_loop
L_diag_end:
    s_endpgm"""

def build_multi(opts=None):
    opts = opts or {}
    ks = []
    def mk(kname, fn, lds):
        a = Asm(); a.kname = kname; a.stamps = opts.get('stamps', False); a.cyc = opts.get('cyc', 0); a.opts = opts
        i = len(ks)
        a.first = (i == 0)
        prologue(a); stamp(a, 2*i)
        if a.stamps and a.first:
            a('v_writelane_b32 v255, s94, 15'); a.smask |= 1 << 15
        fn(a)
        if a.stamps: a.fence()
        stamp(a, 2*i + 1); stamp_flush(a)
        a.label(f'L_end_{kname}'); a('s_endpgm')
        ks.append((kname, finalize(a), lds))
    def k_p0(a):
        a('s_lshl_b32 s54, s2, 3')
        gate_rows(a, 's54', 80, 84)
        p0(a, 0, 8, 84)
    def k_g1(a):
        g1_setup(a, rot=opts.get('rot', True)); g1_main(a)
    mk('p0_kernel', k_p0, 27648)
    mk('g1_kernel', k_g1, G1_END)
    mk('conv_kernel', lambda a: conv(a, 0), 2*CV_U + 2*CV_K + 16384)
    mk('g2_kernel', lambda a: g2(a, 0), 4*G2.NW*2048 + 16384)
    if 'diaga' in opts:
        ks.append(('diag_kernel', diag_body(opts['diaga'], opts['diagb'], opts.get('mult', 10)), 0))
    if opts.get('empty'):
        ks.append(('nop_kernel', 's_endpgm', 0))
    out = ['; generated by work/gen.py (hand-designed schedule, python emitted)']
    order = list(ks)
    if opts.get('empty'): order = (ks[:-1] + [ks[-1]]*opts['empty']) if not opts.get('front') else ([ks[-1]]*opts['empty'] + ks[:-1])
    for kname, _, lds in order: out.append(f'; @launch kernel={kname} grid=(256,1,1) block=(256,1,1) lds={lds}')
    out.append('.amdgcn_target "amdgcn-amd-amdhsa--gfx950"')
    for kname, body, _ in ks: out.append(kernel_text(kname, body, 512, 256))
    out.append('.section .rodata,"a"')
    for kname, _, _ in ks: out.append('.p2align 6\n' + descriptor(kname, 512, 256))
    return '\n'.join(out)

if __name__ == '__main__':
    opts = dict(kv.split('=') for kv in sys.argv[2:])
    opts = {k: int(v) for k, v in opts.items()}
    txt = build_multi(opts)
    open(sys.argv[1] if len(sys.argv) > 1 else 'multi.s', 'w').write(txt)
    print(len(txt), 'bytes')
```

```python
import re

REG_RE = re.compile(r'(?<![\w.])(-?)(abs\()?([vas])(\d+|\[(\d+):(\d+)\])')
def regs_of(tok):
    tok = tok.strip()
    out = []
    if tok in ('vcc',): return ['vcc']
    if tok in ('exec',): return ['exec']
    if tok == 'm0': return ['m0']
    if tok in ('vcc_lo', 'vcc_hi'): return ['vcc']
    if tok in ('exec_lo', 'exec_hi'): return ['exec']
    m = re.fullmatch(r'-?(?:abs\()?\|?([vas])(\d+)\|?\)?', tok)
    if m: return [m.group(1) + m.group(2)]
    m = re.fullmatch(r'-?([vas])\[(\d+):(\d+)\]', tok)
    if m: return [m.group(1) + str(i) for i in range(int(m.group(2)), int(m.group(3)) + 1)]
    return []

TRANS = ('v_exp_f32', 'v_log_f32', 'v_rcp_f32', 'v_rsq_f32', 'v_sqrt_f32', 'v_sin_f32', 'v_cos_f32')
RMW = ('v_fmac_f32', 'v_dot2c_f32_bf16', 'v_pk_fmac_f16', 'v_writelane_b32')

class Ins:
    __slots__ = ('text', 'op', 'kind', 'rd', 'wr', 'tag', 'passes', 'srcC', 'srcAB', 'wide', 'dpp', 'size', 'extra', 'cond')
    def __init__(self, text, tag=None):
        self.text = text; self.tag = tag; self.passes = 0; self.srcC = []; self.srcAB = []; self.wide = False; self.dpp = False
        self.extra = None; self.cond = frozenset()
        t = text.split(';')[0].strip()
        if t.endswith(':'):
            self.op = t; self.kind = 'label'; self.rd = []; self.wr = []; return
        if t.startswith('.'):
            self.op = t; self.kind = 'directive'; self.rd = []; self.wr = []; return
        parts = t.split(None, 1)
        op = parts[0]; self.op = op
        rest = parts[1] if len(parts) > 1 else ''
        ops = [o.strip() for o in re.split(r',(?![^\[\(]*[\]\)])', rest)] if rest else []
        mods = ''
        if ops:
            lp = ops[-1].split(None, 1)
            if lp:
                ops[-1] = lp[0]; mods = lp[1] if len(lp) > 1 else ''
        R = [regs_of(o) for o in ops]
        allr = lambda lst: [x for l in lst for x in l]
        base = re.sub(r'_(e32|e64|dpp|sdwa)$', '', op)
        if op.startswith('v_mfma'):
            self.kind = 'mfma'; self.wr = R[0]; self.srcAB = R[1] + R[2]; self.srcC = R[3]; self.rd = self.srcAB + self.srcC
            self.passes = 8 if '32x32' in op else 4
        elif op.startswith('v_cmp'):
            self.kind = 'valu'; self.wr = R[0]; self.rd = allr(R[1:])
        elif base in ('v_readfirstlane_b32', 'v_readlane_b32'):
            self.kind = 'valu'; self.wr = R[0]; self.rd = allr(R[1:])
        elif op.startswith('v_permlane'):
            self.kind = 'valu'; self.wr = R[0] + R[1]; self.rd = R[0] + R[1]
        elif base in ('v_add_co_u32', 'v_sub_co_u32', 'v_addc_co_u32'):
            self.kind = 'valu'; self.wr = R[0] + R[1]; self.rd = allr(R[2:])
        elif op == 'v_nop':
            self.kind = 'valu'; self.wr = []; self.rd = []
        elif op.startswith('v_'):
            self.kind = 'valu'; self.wr = R[0]; self.rd = allr(R[1:])
            if base in RMW: self.rd += R[0]
            if op.endswith('_dpp') or any(k in mods for k in ('row_', 'quad_perm', 'wave_')):
                self.dpp = True; self.rd += R[0]
        elif op.startswith('ds_read') or op.startswith('ds_bpermute') or op.startswith('ds_swizzle'):
            self.kind = 'dsr'; self.wr = R[0]; self.rd = allr(R[1:])
        elif op.startswith('ds_'):
            self.kind = 'dsw'; self.wr = []; self.rd = allr(R)
        elif op.startswith('buffer_load') or op.startswith('global_load'):
            if re.search(r'\blds\b', mods) or '_lds_' in op:
                self.kind = 'dma'; self.wr = []; self.rd = allr(R) + ['m0']
            else:
                self.kind = 'vld'; self.wr = R[0]; self.rd = allr(R[1:])
        elif op.startswith('buffer_store') or op.startswith('global_store'):
            self.kind = 'vst'; self.wr = []; self.rd = allr(R)
            self.wide = op.endswith('x4') or op.endswith('x3')
            self.extra = R[0] if op.startswith('buffer') else R[1]
        elif op.startswith('buffer_atomic') or op.startswith('global_atomic'):
            self.kind = 'vst'; self.rd = allr(R); self.wr = R[0] if re.search(r'\bsc0\b', mods) else []
            if self.wr: self.kind = 'vld'
        elif op in ('buffer_wbl2', 'buffer_inv'):
            self.kind = 'vst'; self.rd = []; self.wr = []
        elif op.startswith('s_load') or op.startswith('s_buffer_load') or op in ('s_memtime', 's_memrealtime'):
            self.kind = 'smem'; self.wr = R[0]; self.rd = allr(R[1:])
        elif op == 's_waitcnt': self.kind = 'wait'; self.rd = []; self.wr = []
        elif op == 's_nop': self.kind = 'nop'; self.rd = []; self.wr = []; self.extra = int(ops[0], 0) + 1
        elif op in ('s_barrier', 's_endpgm', 's_setprio', 's_sleep'): self.kind = 'sctl'; self.rd = []; self.wr = []
        elif op.startswith('s_cbranch') or op == 's_branch':
            self.kind = 'branch'; self.wr = []; self.rd = ['vcc'] if 'vcc' in op else (['exec'] if 'exec' in op else [])
        elif op.startswith('s_cmp') or op.startswith('s_bitcmp'):
            self.kind = 'salu'; self.wr = []; self.rd = allr(R)
        elif op.startswith('s_'):
            self.kind = 'salu'; self.wr = list(R[0]); self.rd = allr(R[1:])
            if 'saveexec' in op: self.wr += ['exec']; self.rd += ['exec']
            if op in ('s_addk_i32', 's_mulk_i32'): self.rd += R[0]
        else:
            raise ValueError('unknown instruction: ' + text)

VM = ('vld', 'vst', 'dma')
LG = ('dsr', 'dsw', 'smem')

class Asm:
    def __init__(self):
        self.ins = []
        self.nlabel = 0
    def __call__(self, text, tag=None):
        for line in text.split('\n'):
            line = line.strip()
            if not line or line.startswith(';'): continue
            self.ins.append(Ins(line, tag))
        return self
    def add(self, ins): self.ins.append(ins)
    def label(self, name): self.ins.append(Ins(name + ':'))
    def newlabel(self, base='L'):
        self.nlabel += 1; return f'{base}_{self.nlabel}'
    def wait_vm(self, tag):
        i = Ins('s_waitcnt vmcnt(0)'); i.kind = 'waitvm'; i.extra = tag; self.ins.append(i)
    def wait_lg(self, tag):
        i = Ins('s_waitcnt lgkmcnt(0)'); i.kind = 'waitlg'; i.extra = tag; self.ins.append(i)
    def fence(self):
        self('s_waitcnt vmcnt(0) lgkmcnt(0)')

def mark_cond(ins):
    labels = {I.op[:-1]: k for k, I in enumerate(ins) if I.kind == 'label'}
    for I in ins: I.cond = frozenset()
    for k, I in enumerate(ins):
        if I.kind == 'branch':
            tgt = I.text.split(';')[0].split()[-1]
            if tgt == 'L_end' or tgt not in labels: continue
            e = labels[tgt]
            if e > k:
                for j in range(k + 1, e): ins[j].cond = ins[j].cond | {k}

def match(tag, want):
    if tag is None: return False
    if isinstance(want, (list, tuple, set)): return any(match(tag, w) for w in want)
    return tag == want

def insert_waits(ins):
    out = []
    vm = []
    lg = []
    cur = [frozenset()]
    def emit_wait(nvm=None, nlg=None):
        parts = []
        if nvm is not None:
            young = vm[len(vm) - nvm:] if nvm else []
            n = min(sum(1 for o in young if o.cond <= cur[0]), 63); parts.append(f'vmcnt({n})')
            if not cur[0]: del vm[:len(vm) - nvm]
        if nlg is not None:
            if any(o.kind == 'smem' for o in lg): nlg = 0
            young = lg[len(lg) - nlg:] if nlg else []
            n = min(sum(1 for o in young if o.cond <= cur[0]), 15); parts.append(f'lgkmcnt({n})')
            if not cur[0]: del lg[:len(lg) - nlg]
        if parts:
            w = Ins('s_waitcnt ' + ' '.join(parts)); w.cond = cur[0]; out.append(w)
    mark_cond(ins)
    for I in ins:
        cur[0] = I.cond
        if I.kind == 'waitvm':
            idx = [k for k, o in enumerate(vm) if match(o.tag, I.extra)]
            if idx: emit_wait(nvm=len(vm) - 1 - idx[-1])
            continue
        if I.kind == 'waitlg':
            idx = [k for k, o in enumerate(lg) if match(o.tag, I.extra)]
            if idx: emit_wait(nlg=len(lg) - 1 - idx[-1])
            continue
        if I.kind == 'wait' and I.cond:
            if 'vmcnt(0)' in I.text: vm[:] = [o for o in vm if not (I.cond <= o.cond)]
            if 'lgkmcnt(0)' in I.text: lg[:] = [o for o in lg if not (I.cond <= o.cond)]
            out.append(I); continue
        if I.kind == 'wait':
            m = re.search(r'vmcnt\((\d+)\)', I.text)
            if m: n = int(m.group(1)); del vm[:max(0, len(vm) - n)]
            m = re.search(r'lgkmcnt\((\d+)\)', I.text)
            if m:
                n = int(m.group(1))
                if n == 0: lg.clear()
                elif not any(o.kind == 'smem' for o in lg): del lg[:max(0, len(lg) - n)]
            out.append(I); continue
        touched = set(I.rd) | set(I.wr)
        nvm = nlg = None
        if touched:
            for k in range(len(vm) - 1, -1, -1):
                if vm[k].wr and touched & set(vm[k].wr):
                    if I.kind == 'vld' and not (set(I.rd) & set(vm[k].wr)): continue
                    nvm = len(vm) - 1 - k; break
            for k in range(len(lg) - 1, -1, -1):
                if lg[k].wr and touched & set(lg[k].wr):
                    nlg = len(lg) - 1 - k; break
        if nvm is not None or nlg is not None: emit_wait(nvm, nlg)
        out.append(I)
        if I.kind in VM:
            vm.append(I)
        if I.kind in LG: lg.append(I)
        if I.op == 's_endpgm': vm.clear(); lg.clear()
    return out

def need_states(P, C):
    n = 0
    pw = set(P.wr); crd = set(C.rd); cwr = set(C.wr)
    isv = lambda s: {r for r in s if r[0] in 'va' and r != 'vcc'}
    iss = lambda s: {r for r in s if r[0] == 's' or r == 'vcc'}
    if P.kind == 'valu':
        pv = isv(pw); ps = iss(pw)
        if C.kind == 'mfma' and pv & crd: n = max(n, 2)
        if C.kind == 'valu':
            if pv & crd:
                if C.op.startswith('v_permlane') or C.dpp: n = max(n, 2)
                if C.op.startswith('v_readlane') or C.op.startswith('v_readfirstlane'): n = max(n, 1)
                if re.sub(r'_(e32|e64)$', '', P.op) in TRANS and re.sub(r'_(e32|e64)$', '', C.op) not in TRANS: n = max(n, 1)
            if ps & crd:
                n = max(n, 4 if (C.op.startswith('v_readlane') or C.op.startswith('v_writelane')) else 2)
        if C.kind in VM and ps & crd: n = max(n, 5)
        if 'exec' in pw and C.kind == 'mfma': n = max(n, 4)
    if P.op.startswith('v_dot'):
        if C.op == P.op:
            ops = C.text.split(';')[0].split(None, 1)[1].split(',')
            ab = set(regs_of(ops[1]) + regs_of(ops[2]))
            if pw & ab: n = max(n, 3)
        elif pw & (crd | cwr): n = max(n, 3)
    if P.kind == 'mfma':
        big = P.passes == 8
        if C.kind == 'mfma':
            if pw & set(C.srcAB): n = max(n, 12 if big else 8)
            if pw & set(C.srcC) and not (P.wr == C.srcC and P.passes == C.passes): n = max(n, 10 if big else 6)
            if pw & cwr and not (P.wr == C.wr and P.wr == C.srcC): n = max(n, 12 if big else 8)
        elif C.kind in ('valu', 'dsr', 'dsw') + VM:
            if pw & (crd | cwr): n = max(n, 12 if big else 8)
            if C.kind == 'valu' and set(P.srcC) & cwr: n = max(n, 7 if big else 3)
    if P.kind == 'salu' and 'm0' in pw and C.kind == 'dma': n = max(n, 1)
    if P.kind == 'vst' and P.wide and set(P.extra) & cwr: n = max(n, 2 if C.kind == 'valu' else 1)
    return n

def insert_nops(ins, window=24):
    out = []
    for I in ins:
        if I.kind in ('label', 'directive'):
            out.append(I); continue
        need = 0; dist = 0; scanned = 0
        for P in reversed(out):
            if P.kind in ('label', 'directive'): continue
            r = need_states(P, I)
            if r > dist: need = max(need, r - dist)
            if P.cond <= I.cond: dist += P.extra if P.kind == 'nop' else 1
            scanned += 1
            if dist >= window or scanned > 80: break
        while need > 0:
            k = min(need, 16); nn = Ins(f's_nop {k-1}'); nn.cond = I.cond; out.append(nn); need -= k
        out.append(I)
    return out

def finalize(asm):
    ins = insert_waits(asm.ins)
    ins = insert_nops(ins)
    return '\n'.join((I.text if I.kind == 'label' else '    ' + I.text) for I in ins)

def stats(text):
    from collections import Counter
    c = Counter()
    for l in text.split('\n'):
        l = l.strip()
        if l and not l.endswith(':') and not l.startswith(';') and not l.startswith('.'):
            c[l.split()[0]] += 1
    return c
```

```python
import sys
from asmlib import *

NAME = 'gated_mix__ssm_conv_h3__glu_gated_reglu__prompt'
S, D, F = 2048, 512, 1792
WS_KVT = 0
WS_Y = 2 << 20
WS_H = 4 << 20
WS_G = 12 << 20
WS_F1 = 13 << 20
WS_F2 = WS_F1 + 0x10000
WS_F3 = WS_F1 + 0x20000
FS = 6
WS_STAMP = 14 << 20
WS_SIZE = 16 << 20
LDS_TOTAL = 163840

sW, sXCD, sJ = 's4', 's5', 's6'
sT = 's7'
SRD_Q, SRD_K, SRD_V, SRD_SH, SRD_SK, SRD_W, SRD_WD, SRD_GW, SRD_OUT, SRD_WS, SRD_DBG = \
    ['s[%d:%d]' % (8 + 4 * i, 11 + 4 * i) for i in range(11)]
sD = 's52'
sL1, sL2 = 's100', 's7'
sP = 's53'
sRB, sFS = 's54', 's55'
TT = 56
sX = ['s84', 's85', 's86']
sWC = 's3'
BIAS = 4096
sMX, sMW = 's87', 's88'
sHB = 's89'
sA, sB = 's90', 's91'
sSB, sDB = 's94', 's95'
sU, sK = 's96', 's97'
sC4 = 's98'
sME = 's99'
sWT = 's101'
sSPIN = 's1'

vL16 = 1
vN = 2
vF = 4
vFA = 6
vZ = 7
vG = 8
vD = 249
vPF = 250
G1ACC = 16
XR, WR, XD, WD = 128, 132, 134, 138
P_SH, P_P, P_V, P_Q, P_R = 146, 148, 158, 166, 176
G_T = 200
K_A, K_C, K_Z = 154, 146, 166
(pKO, pTR, pSHA, pLW, pLR, pST, cA, cU, cDt, cKW, cZA, cRW, cRR, cYS,
 gWD, gWD1, gAe0, gAe1, gAl0, gAl1, gH0, gH1, gQ, gY, gQR, gYR, gRW, gRR, gOW, gOR, gOS, gGA, cHW) = range(216, 249)
CV_UF, CV_AF, CV_ACC = 16, 144, 176
G2ACC = 16
G2AT = 224
def hslot(i):
    if i < 4: return 'a', 224 + 8*i
    if i == 4: return 'v', 208
    return 'v', 80 + 8*(i - 5)
NH = 21

G1_XS, G1_WB, G1_WS, G1_UP = 16384, 49152, 28928, 14464
G1_END = G1_WB + 3*G1_WS
P0_L = G1_END
CV_U, CV_KS = 4608, 4160
CV_K = 4*CV_KS
CV_L = LDS_TOTAL - 2*CV_U - 2*CV_K
CV_RL = 90624
CV_DUMMY = G1_WB + 2*G1_WS
WD_BLK = [32768, 40960, 0, 8192, 49152, 57344, 65536, 16384, 24576, 73728, 81920]
WD_N23, WD_N27 = 2, 7
G2_RL = G1_WB + 2*G1_WS
W_ORD = [0, 4, 8, 1, 2, 3, 12, 5, 6, 7, 16, 9, 10, 11, 20, 13, 14, 15, 24, 17, 18, 19, 21, 22, 23, 25, 26, 27]
H_ORD = [0, 1] + [4*b for b in range(1, 7)] + [2] + [4*b + 1 for b in range(1, 7)] + [3] + [4*b + 2 for b in range(1, 7)] + [4*b + 3 for b in range(1, 7)]
assert sorted(W_ORD) == list(range(28)) and sorted(H_ORD) == list(range(28))

class Item:
    def __init__(self, ins, nb=0, cost=None, gap=0):
        self.ins = [(i, None) if isinstance(i, str) else i for i in ins]
        self.nb = nb; self.gap = gap
        self.cost = cost if cost is not None else sum(1 for t, _ in self.ins if not t.startswith('@') or t in ('@waitvm',))

class Sched:
    def __init__(self, a):
        self.a = a; self.q = []; self.beat = 0
    def queue(self, name, items, pace=0, force=False):
        q = dict(name=name, items=list(items), pace=pace, ok=0, force=force); self.q.append(q); return q
    def emit(self, it):
        a = self.a
        for t, g in it.ins:
            if t == '@waitvm': a.wait_vm(g)
            elif t == '@waitlg': a.wait_lg(g)
            elif t == '@call': g(a)
            else: a(t, g)
    def step(self, mfma, own=(), cap=5, pre=None, post=0):
        a = self.a
        if pre: a.wait_lg(pre)
        a(mfma)
        used = post
        for o in own:
            if isinstance(o, Item): self.emit(o); used += o.cost
            elif isinstance(o, tuple): a(o[0], o[1]); used += 1
            else: a(o); used += 1
        for q in self.q:
            while q['force'] and q['items'] and q['items'][0].nb <= self.beat:
                it = q['items'].pop(0); self.emit(it); used += it.cost
        progress = True
        while progress:
            progress = False
            for q in self.q:
                if not q['force'] and q['items'] and q['items'][0].nb <= self.beat and q['ok'] <= self.beat:
                    it = q['items'][0]
                    if used + it.cost <= cap or (it.cost > cap - 2 and used <= min(2, cap - 1)):
                        q['items'].pop(0); self.emit(it); used += it.cost
                        vm = any(t.startswith('buffer_') for t, _ in it.ins)
                        q['ok'] = self.beat + max(q['pace'] if vm else 0, it.gap); progress = True
                        break
        self.beat += 1
    def drain(self, q, upto=None):
        while q['items'] and (upto is None or q['items'][0].nb <= upto):
            self.emit(q['items'].pop(0))

def stamp(a, i, name=None):
    if not a.opts.get('stamps'): return
    flush_pending(a)
    i = a.nstamp; a.nstamp += 1; a.names.append(name or str(i))
    a(f"""{'s_memtime' if a.opts.get('cyc') else 's_memrealtime'} s[92:93]
          s_waitcnt lgkmcnt(0)
          v_writelane_b32 v255, s92, {i}""")
def stamp_lazy(a, name, reg='s[92:93]'):
    if not a.opts.get('stamps'): return
    i = a.nstamp; a.nstamp += 1; a.names.append(name)
    I = Ins(f"{'s_memtime' if a.opts.get('cyc') else 's_memrealtime'} {reg}"); I.kind = 'salu'; a.add(I)
    a.pending.append((i, reg.split('[')[1].split(':')[0]))
def flush_pending(a):
    if not a.opts.get('stamps') or not a.pending: return
    a('s_waitcnt lgkmcnt(0)')
    for i, r in a.pending: a(f'v_writelane_b32 v255, s{r}, {i}')
    a.pending = []
def stamp_item(i):
    return Item([('@call', lambda a: stamp(a, i))], cost=0)
def stamp_flush(a):
    if not a.opts.get('stamps'): return
    flush_pending(a)
    a(f"""s_lshl_b32 s92, s2, 2
          s_add_u32 s92, s92, {sW}
          s_lshl_b32 s92, s92, 8
          s_add_u32 s92, s92, {WS_STAMP}
          v_lshlrev_b32 v254, 2, v0
          buffer_store_dword v255, v254, {SRD_WS}, s92 offen""")
    print('STAMPS', len(a.names), ' '.join(a.names))
    open(a.outname + '.names', 'w').write(' '.join(a.names))

def prologue(a):
    o = a.opts
    a(f'''s_cmp_ge_u32 s2, 256
          s_cbranch_scc1 L_end
          s_load_dwordx16 s[56:71], s[0:1], 0
          s_load_dwordx8 s[72:79], s[0:1], 64
          s_load_dwordx4 s[80:83], s[0:1], 96
          v_lshrrev_b32 v1, 6, v0
          s_and_b32 {sXCD}, s2, 7
          v_readfirstlane_b32 {sW}, v1
          s_lshr_b32 {sJ}, s2, 3
          v_and_b32 v0, 63, v0
          v_lshlrev_b32 v{vL16}, 4, v0''')

    T = G_T
    a(f'''s_and_b32 {sRB}, {sXCD}, 1
          s_lshl_b32 {sRB}, {sRB}, 3
          s_and_b32 s3, {sJ}, 7
          s_add_u32 {sRB}, {sRB}, s3
          s_lshr_b32 {sFS}, {sXCD}, 1
          s_lshl_b32 {sFS}, {sFS}, 2
          s_lshr_b32 s3, {sJ}, 3
          s_add_u32 {sFS}, {sFS}, s3''')
    rot = o.get('rot', 2)
    if rot == 2:
        a(f's_and_b32 {sX[0]}, {sXCD}, 6\ns_and_b32 s3, {sXCD}, 1\ns_lshl_b32 s3, s3, 2\ns_add_u32 {sX[0]}, {sX[0]}, s3\ns_and_b32 {sX[0]}, {sX[0]}, 7')
    elif rot == 1:
        a(f's_lshl_b32 {sX[0]}, {sFS}, 1\ns_add_u32 {sX[0]}, {sX[0]}, {sRB}\ns_and_b32 {sX[0]}, {sX[0]}, 7')
    else: a(f's_mov_b32 {sX[0]}, 0')
    if o.get('lf', 1): a(f's_and_b32 {sU}, {sFS}, 3\ns_and_b32 {sK}, {sRB}, 7')
    else: a(f's_mov_b32 {sU}, 0\ns_mov_b32 {sK}, 0')
    a(f'''s_lshl_b32 {sX[0]}, {sX[0]}, 7
          s_add_u32 {sX[1]}, {sX[0]}, 128
          s_and_b32 {sX[1]}, {sX[1]}, 1023
          s_add_u32 {sX[2]}, {sX[1]}, 128
          s_and_b32 {sX[2]}, {sX[2]}, 1023
          s_lshl_b32 {sA}, {sRB}, 17
          s_lshl_b32 s3, {sW}, 15
          s_add_u32 {sA}, {sA}, s3
          s_add_u32 {sA}, {sA}, {BIAS}
          s_mul_i32 {sB}, {sFS}, 224
          s_add_u32 {sB}, {sB}, {BIAS}
          s_and_b32 {sP}, {sW}, 1
          v_lshrrev_b32 v{T}, 3, v0
          v_lshrrev_b32 v{T+1}, 4, v0
          v_and_b32 v{T+2}, 7, v0
          v_xor_b32 v{T+1}, v{T+1}, v{T+2}
          v_xor_b32 v{T+2}, 4, v{T+1}
          v_add_u32 v{T+1}, {sK}, v{T+1}
          v_add_u32 v{T+2}, {sK}, v{T+2}
          v_and_b32 v{T+1}, 7, v{T+1}
          v_and_b32 v{T+2}, 7, v{T+2}
          v_lshlrev_b32 v{T}, 10, v{T}
          v_lshl_add_u32 v{T+1}, v{T+1}, 4, v{T}
          v_lshl_add_u32 v{T+2}, v{T+2}, 4, v{T}''')
    for i in range(4):
        a(f'''s_add_u32 s3, {sU}, {i}
              s_and_b32 s3, s3, 3
              s_lshl_b32 s3, s3, 13
              s_add_u32 s3, s3, {sA}
              s_sub_u32 s3, s3, {1024*i}
              v_add_u32 v{XD+i}, s3, v{T+1+(i&1)}''')
    a(f'''s_mov_b32 {sA}, {(2**32 + 13)//14}
          s_lshl_b32 {sT}, {sK}, 3
          s_lshl_b32 s3, {sP}, 6
          v_add_u32 v{T}, s3, v0''')
    for u in range(7):
        a(f'''v_add_u32 v{T+3}, {128*u}, v{T}
              v_mul_hi_u32 v{T+4}, v{T+3}, {sA}
              v_mul_u32_u24 v{T+5}, 14, v{T+4}
              v_sub_u32 v{T+3}, v{T+3}, v{T+5}
              v_add_u32 v{T+4}, {sT}, v{T+4}
              v_and_b32 v{T+4}, 63, v{T+4}
              v_mul_u32_u24 v{T+4}, 3584, v{T+4}
              v_lshl_add_u32 v{T+3}, v{T+3}, 4, v{T+4}
              v_add_u32 v{WD+u}, {sB}, v{T+3}''')
        if u & 1: a(f'v_subrev_u32 v{WD+u}, 2048, v{WD+u}')
    a(f'''s_lshr_b32 s3, {sW}, 1
          s_mul_i32 {sMW}, s3, {G1_UP}
          s_lshl_b32 s3, {sP}, 10
          s_add_u32 {sMW}, {sMW}, s3
          s_add_u32 {sMW}, {sMW}, {G1_WB}
          s_lshl_b32 {sMX}, {sW}, 12
          s_waitcnt lgkmcnt(0)''')
    if o.get('stamps'):
        a('v_writelane_b32 v255, s92, 0'); a.nstamp = 1; a.names = ['start']; a.pending = []
    def srd(base, lo, size):
        a(f'''s_mov_b32 s{base}, s{lo}
              s_mov_b32 s{base+1}, s{lo+1}
              s_mov_b32 s{base+2}, {size}
              s_mov_b32 s{base+3}, 0x20000''')
    a(f'''s_sub_u32 s8, s56, {BIAS}
          s_subb_u32 s9, s57, 0
          s_mov_b32 s10, {S*D*2 + BIAS}
          s_mov_b32 s11, 0x20000
          s_cmp_lt_u32 {sW}, 2
          s_cselect_b32 s28, s70, s72
          s_cselect_b32 s29, s71, s73
          s_sub_u32 s28, s28, {BIAS}
          s_subb_u32 s29, s29, 0
          s_mov_b32 s30, {D*F*2 + BIAS}
          s_mov_b32 s31, 0x20000''')
    def emit(items):
        for it in items:
            for t, g in it.ins: a(t, g)
    if o.get('pst'): stamp(a, 0, 'karg')
    emit(g1_lead(0))
    if o.get('pst'): stamp(a, 0, 'l0')
    srd(12, 58, S*D*2); srd(16, 60, S*D*2); srd(20, 62, D*8)
    setup_p0(a)
    emit(p0_dma_items())
    if o.get('pst'): stamp(a, 0, 'p0i')
    srd(48, 80, 256)
    a(f'''s_memrealtime s[90:91]
          s_or_b32 s3, s2, {sW}
          s_cmp_eq_u32 s3, 0
          s_cselect_b32 s3, 0, 0x1000
          v_mov_b32 v{vFA}, s3
          s_waitcnt lgkmcnt(0)
          s_or_b32 s90, s90, 1
          v_mov_b32 v{vN}, s90
          v_mov_b32 v{vN+1}, s91
          s_mov_b64 exec, 1
          buffer_store_dwordx2 v[{vN}:{vN+1}], v{vFA}, {SRD_DBG}, 0 offen sc1
          s_mov_b64 exec, -1''')
    if o.get('pst'): stamp(a, 0, 'nonce')
    srd(24, 64, D*S*2)
    srd(32, 74, F*D*2); srd(36, 76, D*2); srd(40, 78, S*D*2); srd(44, 82, WS_SIZE)
    a(f'''s_lshl_b32 s3, {sXCD}, 7
          s_lshl_b32 {sT}, {sJ}, 2
          s_add_u32 s3, s3, {sT}
          s_and_b32 {sT}, {sW}, 2
          s_add_u32 s3, s3, {sT}
          v_mov_b32 v{vZ}, s3''')
    a(f'global_load_ushort v{vD}, v{vZ}, s[66:67]', 'dld')
    setup_rest(a)
    stamp(a, 0, 'setup')
    emit(g1_lead(1))
    emit(g1_follow(0))
    stamp(a, 0, 'f0iss')
    a.wait_vm('p0dma')
    a('s_barrier')
    stamp(a, 0, 'p0go')
    va, st = p0_compute_items()
    vm = g1_lead(2) + g1_follow(1)[:o.get('f1pre', 4)]
    a.pend1 = g1_follow(1, o.get('f1pre', 4)); a.pend2 = g1_follow(2)
    step = max(1, (len(va) - 12)//(len(vm) + 1))
    for i, it in enumerate(va):
        emit([it])
        if i >= 9 and (i - 9) % step == step - 1 and vm: emit([vm.pop(0)])
    emit(vm); a.kvst = st

def setup_p0(a):
    T = G_T
    a(f'''v_lshrrev_b32 v{T}, 3, v0
          v_and_b32 v{T+1}, 7, v0
          v_lshlrev_b32 v{T+2}, 10, v{T}
          v_lshl_add_u32 v{T+2}, v{T+1}, 4, v{T+2}
          s_lshl_b32 s3, {sJ}, 16
          s_lshl_b32 {sT}, {sXCD}, 7
          s_add_u32 s3, s3, {sT}
          v_add_u32 v{pKO}, s3, v{T+2}
          v_lshrrev_b32 v{T+2}, 4, v0
          v_lshlrev_b32 v{pTR}, 11, v{T+2}
          v_bfe_u32 v{T+3}, v0, 2, 2
          v_lshl_add_u32 v{pTR}, v{T+3}, 7, v{pTR}
          v_and_b32 v{T+3}, 3, v0
          v_lshl_add_u32 v{pTR}, v{T+3}, 3, v{pTR}
          s_lshl_b32 s3, {sW}, 5
          s_add_u32 s3, s3, {P0_L}
          v_add_u32 v{pTR}, s3, v{pTR}
          v_and_b32 v{T+3}, 15, v0
          s_lshl_b32 s3, {sXCD}, 9
          s_lshl_b32 {sT}, {sW}, 7
          s_add_u32 s3, s3, {sT}
          v_lshl_add_u32 v{pSHA}, v{T+3}, 3, s3
          v_mul_u32_u24 v{pLW}, 144, v{T+3}
          v_lshl_add_u32 v{pLW}, v{T+2}, 5, v{pLW}
          s_mul_i32 s3, {sW}, 2304
          s_add_u32 s3, s3, {P0_L + 17*1024}
          v_add_u32 v{pLW}, s3, v{pLW}
          v_mul_u32_u24 v{pLR}, 144, v{T}
          v_lshl_add_u32 v{pLR}, v{T+1}, 4, v{pLR}
          v_add_u32 v{pLR}, s3, v{pLR}
          v_lshlrev_b32 v{pST}, 12, v{T}
          v_lshl_add_u32 v{pST}, v{T+1}, 4, v{pST}
          s_lshl_b32 s3, {sXCD}, 18
          s_lshl_b32 {sT}, {sW}, 16
          s_add_u32 s3, s3, {sT}
          s_lshl_b32 {sT}, {sJ}, 7
          s_add_u32 s3, s3, {sT}
          s_add_u32 s3, s3, {WS_KVT}
          v_add_u32 v{pST}, s3, v{pST}''')

def setup_rest(a):
    T = G_T
    a(f'''s_lshl_b32 s3, {sU}, 3
          v_subrev_u32 v{T}, s3, v0
          v_and_b32 v{T}, 31, v{T}
          v_lshrrev_b32 v{T+1}, 5, v0
          v_bfe_u32 v{T+2}, v{T}, 1, 3
          v_xor_b32 v{T+1}, v{T+1}, v{T+2}
          v_lshlrev_b32 v{T}, 7, v{T}
          v_lshl_add_u32 v{T}, v{T+1}, 4, v{T}
          v_add_u32 v{XR}, {sMX}, v{T}
          v_xor_b32 v{XR+1}, 32, v{XR}
          v_xor_b32 v{XR+2}, 64, v{XR}
          v_xor_b32 v{XR+3}, 96, v{XR}
          v_bfe_u32 v{T}, v0, 4, 1
          v_mul_u32_u24 v{T}, {G1_UP}, v{T}
          v_lshrrev_b32 v{T+1}, 5, v0
          v_lshlrev_b32 v{T+1}, 3, v{T+1}
          v_bfe_u32 v{T+2}, v0, 2, 2
          v_add_u32 v{T+1}, v{T+1}, v{T+2}
          v_mul_u32_u24 v{T+1}, 224, v{T+1}
          v_and_b32 v{T+2}, 3, v0
          v_lshl_add_u32 v{T+1}, v{T+2}, 3, v{T+1}
          v_add_u32 v{T}, v{T}, v{T+1}
          v_add_u32 v{WR}, {G1_WB}, v{T}
          v_add_u32 v{WR+1}, {G1_WB + 2*G1_WS}, v{T}''')
    a(f'''s_lshl_b32 s3, {sRB}, 2
          s_add_u32 s3, s3, {sW}
          s_mul_i32 s3, s3, 112
          s_mul_i32 {sT}, {sFS}, 7
          s_add_u32 s3, s3, {sT}
          s_lshl_b32 s3, s3, 10
          s_add_u32 {sHB}, s3, {WS_H}''')
    Z = T
    a(f'''s_lshr_b32 {sT}, {sW}, 1
          s_mul_i32 {sU}, {sT}, {CV_U}
          s_add_u32 {sU}, {sU}, {CV_L}
          s_mul_i32 {sK}, {sT}, {CV_K}
          s_add_u32 {sK}, {sK}, {CV_L + 2*CV_U}
          s_lshl_b32 {sC4}, {sXCD}, 6
          s_lshl_b32 s3, {sJ}, 1
          s_add_u32 {sC4}, {sC4}, s3
          s_add_u32 {sC4}, {sC4}, {sT}
          s_lshl_b32 {sC4}, {sC4}, 12
          s_lshl_b32 s3, {sP}, 11
          s_add_u32 {sC4}, {sC4}, s3
          v_add_u32 v{Z}, {sU}, v{vL16}
          v_subrev_u32 v{Z+1}, 32, v0
          v_lshrrev_b32 v{Z+1}, 1, v{Z+1}
          v_mul_u32_u24 v{Z+1}, {CV_KS}, v{Z+1}
          v_and_b32 v{Z+2}, 1, v0
          v_lshl_add_u32 v{Z+1}, v{Z+2}, 4, v{Z+1}
          v_add_u32 v{Z+1}, {sK}, v{Z+1}
          v_cmp_gt_u32 vcc, 32, v0
          v_cndmask_b32 v{cZA}, v{Z+1}, v{Z}, vcc
          s_cmp_eq_u32 {sP}, 0
          s_cselect_b32 s3, {sK}, {CV_DUMMY}
          v_mov_b32 v{cHW}, s3
          s_cselect_b64 vcc, -1, 0
          v_add_u32 v{Z}, {CV_DUMMY}, v{vL16}
          v_cndmask_b32 v{cZA}, v{Z}, v{cZA}, vcc
          s_lshl_b32 s3, {sP}, 10
          s_add_u32 s3, s3, {sK}
          v_add_u32 v{cKW}, s3, v{vL16}
          v_and_b32 v{Z}, 15, v0
          v_lshrrev_b32 v{Z+1}, 4, v0
          v_add_u32 v{Z+2}, 1, v{Z}
          v_and_b32 v{Z+3}, 3, v{Z+2}
          v_mul_u32_u24 v{cA}, {CV_KS}, v{Z+3}
          v_and_b32 v{Z+2}, 28, v{Z+2}
          v_lshlrev_b32 v{Z+3}, 3, v{Z+1}
          v_sub_u32 v{Z+2}, v{Z+2}, v{Z+3}
          v_add_u32 v{Z+2}, 24, v{Z+2}
          v_lshl_add_u32 v{cA}, v{Z+2}, 1, v{cA}
          s_lshl_b32 s3, {sP}, 6
          s_add_u32 {sT}, s3, {sK}
          v_add_u32 v{cA}, {sT}, v{cA}
          v_lshl_add_u32 v{cU}, v{Z}, 1, v{Z+1}
          v_lshlrev_b32 v{cU}, 4, v{cU}
          s_sub_u32 {sT}, {sU}, s3
          s_add_u32 {sT}, {sT}, {30*16 - 384}
          v_add_u32 v{cU}, {sT}, v{cU}
          v_lshrrev_b32 v{Z+2}, 1, v{Z+1}
          v_lshl_add_u32 v{Z+2}, v{Z}, 1, v{Z+2}
          v_lshlrev_b32 v{cDt}, 4, v{Z+2}
          v_and_b32 v{Z+2}, 1, v{Z+1}
          v_lshlrev_b32 v{Z+2}, 3, v{Z+2}
          v_sub_u32 v{cDt}, v{cDt}, v{Z+2}
          s_lshl_b32 s3, {sP}, 11
          s_add_u32 {sT}, s3, {sU}
          s_add_u32 {sT}, {sT}, {512 + 8}
          v_add_u32 v{cDt}, {sT}, v{cDt}
          s_lshl_b32 s3, {sW}, 12
          s_add_u32 {sT}, s3, {CV_RL}
          v_add_u32 v{cRW}, {sT}, v{vL16}
          s_xor_b32 {sT}, s3, 4096
          s_add_u32 {sT}, {sT}, {CV_RL}
          v_add_u32 v{cRR}, {sT}, v{vL16}
          v_bfe_u32 v{Z}, v0, 4, 1
          v_bfe_u32 v{Z+1}, v0, 2, 2
          v_lshl_add_u32 v{Z}, v{Z}, 2, v{Z+1}
          v_lshlrev_b32 v{Z}, 7, v{Z}
          v_lshrrev_b32 v{Z+1}, 5, v0
          v_and_b32 v{Z+2}, 3, v0
          v_lshl_add_u32 v{Z+1}, v{Z+1}, 2, v{Z+2}
          v_lshl_add_u32 v{Z}, v{Z+1}, 4, v{Z}
          s_add_u32 s3, {sC4}, {WS_Y}
          v_add_u32 v{cYS}, s3, v{Z}''')

def setup_late(opts):
    a = Asm(); a.opts = opts
    T = 10
    a(f'''s_lshl_b32 {sSB}, {sXCD}, 2
          s_and_b32 {sD}, {sJ}, 3
          s_add_u32 {sSB}, {sSB}, {sD}
          s_lshr_b32 {sDB}, {sJ}, 2
          s_mul_i32 {sL1}, {sW}, {448*1024}
          s_lshl_b32 {sD}, {sDB}, 7
          s_add_u32 {sL1}, {sL1}, {sD}
          v_lshrrev_b32 v{T}, 3, v0
          v_lshlrev_b32 v{T}, 10, v{T}
          v_bfe_u32 v{T+1}, v0, 4, 1
          v_lshlrev_b32 v{T+1}, 2, v{T+1}
          v_and_b32 v{T+2}, 7, v0
          v_xor_b32 v{T+1}, v{T+1}, v{T+2}
          v_lshl_add_u32 v{T}, v{T+1}, 4, v{T}
          v_add_u32 v{gWD}, {sL1}, v{T}
          v_add_u32 v{gWD1}, {8192-1024}, v{gWD}
          s_lshl_b32 {sD}, {sSB}, 1
          s_add_u32 {sL1}, {sD}, {sP}
          s_xor_b32 {sL2}, {sL1}, 1
          s_mul_i32 {sL1}, {sL1}, {112*1024}
          s_mul_i32 {sL2}, {sL2}, {112*1024}
          s_mul_i32 {sD}, {sW}, {28*1024}
          s_add_u32 {sD}, {sD}, {WS_H}
          s_add_u32 {sL1}, {sL1}, {sD}
          s_add_u32 {sL2}, {sL2}, {sD}
          v_add_u32 v{gH0}, {sL1}, v{vL16}
          v_add_u32 v{gH1}, {sL2}, v{vL16}
          s_lshl_b32 {sME}, {sW}, 11
          v_lshrrev_b32 v{T}, 5, v0
          v_bfe_u32 v{T+1}, v0, 2, 2
          v_lshl_add_u32 v{T}, v{T}, 2, v{T+1}
          v_lshlrev_b32 v{T}, 7, v{T}
          v_bfe_u32 v{T+1}, v0, 3, 1
          s_lshr_b32 {sD}, {sW}, 1
          v_xor_b32 v{T+1}, {sD}, v{T+1}
          v_lshl_add_u32 v{T}, v{T+1}, 6, v{T}
          v_bfe_u32 v{T+1}, v0, 4, 1
          v_lshl_add_u32 v{T}, v{T+1}, 5, v{T}
          v_and_b32 v{T+1}, 3, v0
          v_lshl_add_u32 v{T}, v{T+1}, 3, v{T}
          v_add_u32 v{gAe0}, {sME}, v{T}
          v_xor_b32 v{gAe1}, 64, v{gAe0}
          v_add_u32 v{gAl0}, 65536, v{gAe0}
          v_add_u32 v{gAl1}, 65536, v{gAe1}''')
    r2 = a.opts.get('rot2', 1)
    if r2:
        a(f'''s_and_b32 {sL1}, {sJ}, 3
              s_add_u32 {sL2}, {sDB}, {sXCD if r2 == 1 else 0}
              s_cmp_ge_u32 {sL2}, 7
              s_cselect_b32 {sD}, 7, 0
              s_sub_u32 {sL2}, {sL2}, {sD}
              s_cmp_ge_u32 {sL2}, 7
              s_cselect_b32 {sD}, 7, 0
              s_sub_u32 {sL2}, {sL2}, {sD}
              s_lshl_b32 {sL2}, {sL2}, 12''')
    else:
        a(f's_mov_b32 {sL1}, 0\ns_mov_b32 {sL2}, 0')
    for i in range(4):
        a(f'''s_add_u32 s{TT+24+i}, {sL1}, {i}
              s_and_b32 s{TT+24+i}, s{TT+24+i}, 3
              s_lshl_b32 s{TT+24+i}, s{TT+24+i}, 10''')
    for b in range(7):
        for i in range(4): a(f's_add_u32 s{TT+4*b+i}, s{TT+24+i}, {sL2}')
        if b < 6:
            a(f'''s_add_u32 {sL2}, {sL2}, 4096
                  s_cmp_eq_u32 {sL2}, {7*4096}
                  s_cselect_b32 {sL2}, 0, {sL2}''')

    it = []
    for I in a.ins:
        if I.op.startswith('s_cselect'): it[-1] = Item([t for t, _ in it[-1].ins] + [I.text])
        else: it.append(Item([I.text]))
    return it

def g1_x(c, i, setm0):
    slot = c % 3
    grp = [f's_add_u32 m0, {sMX}, {slot*G1_XS}'] if setm0 else []
    return Item(grp + [(f'buffer_load_dwordx4 v{XD+i}, {SRD_Q}, {sX[slot]} offen offset:{1024*i} lds', f'g1dma{c}')])
def g1_w(c, u, setm0, setw):
    slot = c % 3
    grp = [f's_mul_i32 {sWC}, {sX[slot]}, 1792'] if setw else []
    if setm0: grp.append(f's_add_u32 m0, {sMW}, {slot*G1_WS + 4096*(u >> 1)}')
    return Item(grp + [(f'buffer_load_dwordx4 v{WD+u}, {SRD_W}, {sWC} offen offset:{2048*(u&1)} lds', f'g1dma{c}')])
def g1_lead(c):
    it = []
    if c >= 3: it.append(Item([f's_add_u32 {sX[c%3]}, {sX[(c-1)%3]}, 128', f's_and_b32 {sX[c%3]}, {sX[c%3]}, 1023']))
    return it + [g1_x(c, 0, True), g1_w(c, 0, True, True)]
def g1_follow(c, start=0):
    pieces = [('x', 1), ('x', 2), ('x', 3)] + [('w', u) for u in range(1, 7)]
    it = []; prev = None
    for k, (kind, i) in enumerate(pieces):
        if k < start: continue
        if kind == 'x': it.append(g1_x(c, i, prev != 'x'))
        else: it.append(g1_w(c, i, prev != 'w' or i % 2 == 0, prev != 'w'))
        prev = kind
    return it

def g1_rdB(k, dst):
    c, ks = k >> 2, k & 3; slot = c % 3
    return f'ds_read_b128 a[{dst}:{dst+3}], v{XR+ks} offset:{slot*G1_XS}'
def g1_rdA(k, t, dst):
    c, ks = k >> 2, k & 3; slot = c % 3
    return [f'ds_read_b64_tr_b16 a[{dst+2*m}:{dst+2*m+1}], v{WR + (1 if slot == 2 else 0)} offset:{(16*ks + 4*m)*224 + 32*t + (G1_WS if slot == 1 else 0)}'
            for m in range(2)]
def g1_reads(k):
    buf = (k & 1)*32
    r = [(g1_rdB(k, buf+28), f'r{k}_b')]
    for t in range(7): r += [(x, f'r{k}_{t}') for x in g1_rdA(k, t, buf + 4*t)]
    return r
def mfma32(acc, A, B, first):
    return f'v_mfma_f32_32x32x16_bf16 v[{acc}:{acc+15}], {A}, {B}, ' + ('0' if first else f'v[{acc}:{acc+15}]')

def flag_store(off_sgpr, lbl=None):
    return ['s_mov_b64 exec, 1', (f'buffer_store_dwordx2 v[{vN}:{vN+1}], off, {SRD_WS}, {off_sgpr} sc1', 'flag'), 's_mov_b64 exec, -1']

def spin(a, cond_ins, reload_ins, name):
    Ld = a.newlabel('L_ok_' + name); Ll = a.newlabel('L_spin_' + name)
    for t in cond_ins: a(t)
    a(f's_cbranch_vccz {Ld}\ns_mov_b32 {sSPIN}, 0')
    a.label(Ll)
    a('s_sleep 1')
    for t in reload_ins: a(t)
    a('s_waitcnt vmcnt(0)')
    for t in cond_ins: a(t)
    a(f'''s_cbranch_vccz {Ld}
          s_add_u32 {sSPIN}, {sSPIN}, 1
          s_cmp_lt_u32 {sSPIN}, 0x10000
          s_cbranch_scc1 {Ll}''')
    a.label(Ld)

def nonce_load(): return Item([(f'buffer_load_dwordx2 v[{vN}:{vN+1}], off, {SRD_DBG}, 0 sc1', 'nonce')])
def nonce_check():
    def f(a):
        spin(a, [f'v_cmp_eq_u64 vcc, 0, v[{vN}:{vN+1}]'], [f'buffer_load_dwordx2 v[{vN}:{vN+1}], off, {SRD_DBG}, 0 sc1'], 'nonce')
    return Item([('@waitvm', 'nonce'), ('@call', f)], cost=3)
def poll_issue(addr_ins, soff):
    return Item(addr_ins + [(f'buffer_load_dwordx2 v[{vF}:{vF+1}], v{vFA}, {SRD_WS}, {soff} offen sc1', 'poll')])
def poll_check(soff, name):
    def f(a):
        spin(a, [f'v_cmp_ne_u64 vcc, v[{vN}:{vN+1}], v[{vF}:{vF+1}]'],
             [f'buffer_load_dwordx2 v[{vF}:{vF+1}], v{vFA}, {SRD_WS}, {soff} offen sc1'], name)
    return Item([('@waitvm', 'poll'), ('@call', f)], cost=3)

def chunks(lst, n):
    return [Item(lst[i:i+n]) for i in range(0, len(lst), n)]

def p0_dma_items():
    KB, VB = P0_L, P0_L + 9*1024
    it = []
    it.append(Item([f's_lshl_b32 {sA}, {sW}, 11', f's_sub_u32 {sA}, {sA}, 8192', f'v_add_u32 v{vZ}, {sA}, v{pKO}', f's_lshl_b32 {sA}, {sW}, 8',
                    f's_add_u32 m0, {sA}, {KB}', 's_mov_b64 exec, 0xffff', (f'buffer_load_dwordx4 v{vZ}, {SRD_K}, 0 offen lds', 'p0dma'),
                    's_mov_b64 exec, -1']))
    it.append(Item([f's_lshl_b32 {sA}, {sW}, 13', f's_add_u32 {sB}, {sA}, 32768', f's_lshl_b32 {sWT}, {sW}, 10']))
    for srd, base in ((SRD_K, KB + 1024), (SRD_V, VB)):
        for jj in range(2):
            it.append(Item([f's_add_u32 m0, {sWT}, {base + jj*4096}',
                            (f'buffer_load_dwordx4 v{pKO}, {srd}, {(sA, sB)[jj]} offen lds', 'p0dma')]))
    it.append(Item([(f'buffer_load_dwordx2 v[{P_SH}:{P_SH+1}], v{pSHA}, {SRD_SH}, 0 offen', 'p0dma')]))
    return it
def p0_compute_items():
    P, Vv, Q, R, sh = P_P, P_V, P_Q, P_R, P_SH
    O = Q
    l = []
    for i in range(5): l.append(f'ds_read_b64_tr_b16 v[{P+2*i}:{P+2*i+1}], v{pTR} offset:{512 + 512*i}')
    for i in range(4): l.append(f'ds_read_b64_tr_b16 v[{Vv+2*i}:{Vv+2*i+1}], v{pTR} offset:{9*1024 + 512*i}')
    l += [f'v_alignbit_b32 v{sh}, v{sh}, v{sh}, 16', f'v_alignbit_b32 v{sh+1}, v{sh+1}, v{sh+1}, 16']
    for i in range(1, 10): l.append(f'v_alignbit_b32 v{Q+i-1}, v{P+i}, v{P+i-1}, 16')
    for i in range(8):
        l += [f'v_dot2_f32_bf16 v{R+2*i}, v{Q+i+1}, v{sh}, 0', f'v_dot2_f32_bf16 v{R+2*i+1}, v{P+i+2}, v{sh}, 0']
    for i in range(8):
        l += [f'v_dot2_f32_bf16 v{R+2*i}, v{Q+i}, v{sh+1}, v{R+2*i}', f'v_dot2_f32_bf16 v{R+2*i+1}, v{P+i+1}, v{sh+1}, v{R+2*i+1}']
    for i in range(8):
        l += [f'v_lshlrev_b32 v{P+(i&1)}, 16, v{Vv+i}', f'v_and_b32 v{Vv+i}, 0xffff0000, v{Vv+i}',
              f'v_mul_f32 v{R+2*i}, v{R+2*i}, v{P+(i&1)}', f'v_mul_f32 v{R+2*i+1}, v{R+2*i+1}, v{Vv+i}']
    for j in range(2):
        for d in range(4): l.append(f'v_cvt_pk_bf16_f32 v{O+4*j+d}, v{R+8*j+7-2*d}, v{R+8*j+6-2*d}')
    l += [f'ds_write_b128 v{pLW}, v[{O}:{O+3}]', f'ds_write_b128 v{pLW}, v[{O+4}:{O+7}] offset:16',
          f'ds_read_b128 v[{R}:{R+3}], v{pLR}', f'ds_read_b128 v[{R+4}:{R+7}], v{pLR} offset:{8*144}']
    st = [Item([f's_mov_b32 {sWT}, 32768', (f'buffer_store_dwordx4 v[{R}:{R+3}], v{pST}, {SRD_WS}, 0 offen sc1', 'kvst')]),
          Item([(f'buffer_store_dwordx4 v[{R+4}:{R+7}], v{pST}, {SRD_WS}, {sWT} offen sc1', 'kvst')])]
    return [Item([x]) for x in l], st
def f1_publish():
    return Item([('@waitvm', 'kvst'), f's_lshl_b32 {sA}, {sXCD}, 2', f's_add_u32 {sA}, {sA}, {sW}', f's_lshl_b32 {sA}, {sA}, 5',
                 f's_add_u32 {sA}, {sA}, {sJ}', f's_lshl_b32 {sA}, {sA}, {FS}', f's_add_u32 {sA}, {sA}, {WS_F1}'] + flag_store(sA))

def g_load_items():
    q0, q1, gw = G_T, G_T+4, G_T+8
    return [Item([f's_lshl_b32 {sA}, {sRB}, 2', f's_add_u32 {sA}, {sA}, {sW}', f's_lshl_b32 {sA}, {sA}, 4', f's_add_u32 {sA}, {sA}, {sFS}',
                  f's_lshl_b32 {sA}, {sA}, 11', f's_add_u32 {sA}, {sA}, {BIAS}']),
            Item([(f'buffer_load_dwordx4 v[{gw}:{gw+3}], v{vL16}, {SRD_GW}, 0 offen', 'gld')]),
            Item([(f'buffer_load_dwordx4 v[{q0}:{q0+3}], v{vL16}, {SRD_Q}, {sA} offen', 'gld')]),
            Item([(f'buffer_load_dwordx4 v[{q1}:{q1+3}], v{vL16}, {SRD_Q}, {sA} offen offset:1024', 'gld')])]
def g_compute_items():
    q0, q1, gw, z0, z1 = G_T, G_T+4, G_T+8, G_T+12, G_T+13
    l = []
    it = []
    t0, t1, t2 = G_T+14, G_T+15, vZ
    for i in range(4):
        l = [f'v_lshlrev_b32 v{t0}, 16, v{gw+i}', f'v_and_b32 v{gw+i}, 0xffff0000, v{gw+i}',
             f'v_lshlrev_b32 v{t1}, 16, v{q0+i}', f'v_lshlrev_b32 v{t2}, 16, v{q1+i}',
             f'v_and_b32 v{q0+i}, 0xffff0000, v{q0+i}', f'v_and_b32 v{q1+i}, 0xffff0000, v{q1+i}']
        if i == 0: l += [f'v_mul_f32 v{z0}, v{t1}, v{t0}', f'v_mul_f32 v{z1}, v{t2}, v{t0}']
        else: l += [f'v_fmac_f32 v{z0}, v{t1}, v{t0}', f'v_fmac_f32 v{z1}, v{t2}, v{t0}']
        l += [f'v_fmac_f32 v{z0}, v{q0+i}, v{gw+i}', f'v_fmac_f32 v{z1}, v{q1+i}, v{gw+i}']
        it += [Item([x]) for x in l]
    it[-1].gap = 1
    for r in (8, 4, 2, 1):
        it.append(Item([f'v_add_f32_dpp v{z0}, v{z0}, v{z0} row_ror:{r} row_mask:0xf bank_mask:0xf',
                        f'v_add_f32_dpp v{z1}, v{z1}, v{z1} row_ror:{r} row_mask:0xf bank_mask:0xf'], gap=1))
    seq = [f'v_permlane16_swap_b32 v{z0}, v{z1}', f'v_add_f32 v{z0}, v{z0}, v{z1}', f'v_mov_b32 v{z1}, v{z0}',
           f'v_permlane32_swap_b32 v{z0}, v{z1}', f'v_add_f32 v{z0}, v{z0}, v{z1}', f'v_cvt_pk_bf16_f32 v{z0}, v{z0}, v{z0}',
           f'v_and_b32 v{z0}, 0xffff0000, v{z0}', f'v_mul_f32 v{z0}, 0xbfb8aa3b, v{z0}', f'v_exp_f32 v{z0}, v{z0}',
           f'v_add_f32 v{z0}, 1.0, v{z0}', f'v_rcp_f32 v{z0}, v{z0}', f'v_cvt_pk_bf16_f32 v{z0}, v{z0}, v{z0}',
           f'v_and_b32 v{q0}, 0xffff0000, v{z0}', f'v_sub_f32 v{z0}, 1.0, v{q0}', f'v_cvt_pk_bf16_f32 v{z0}, v{z0}, v{z0}',
           f'v_and_b32 v{q0+1}, 0xffff0000, v{z0}', f'v_lshrrev_b32 v{z1}, 1, v0']
    it += [Item([x], gap=1 if ('swap' in y or 'exp' in x or 'rcp' in x) else 0) for x, y in zip(seq, seq[1:] + [''])]
    it.append(Item([f's_lshl_b32 {sWT}, {sRB}, 2', f's_add_u32 {sWT}, {sWT}, {sW}', f's_lshl_b32 {sWT}, {sWT}, 4', f's_add_u32 {sWT}, {sWT}, {sFS}',
                    f's_lshl_b32 {sWT}, {sWT}, 4', f's_add_u32 {sWT}, {sWT}, {WS_G}', 's_mov_b64 exec, 0x10001',
                    (f'buffer_store_dwordx2 v[{q0}:{q0+1}], v{z1}, {SRD_WS}, {sWT} offen sc1', 'gst'), 's_mov_b64 exec, -1']))
    return it

def k_load_items():
    it = [Item([f's_lshl_b32 {sA}, {sP}, 10', f's_sub_u32 {sA}, {sC4}, {sA}'])]
    for r in range(2):
        A = K_A + 6*r
        it.append(Item([(f'buffer_load_dwordx4 v[{A}:{A+3}], v{vL16}, {SRD_SK}, {sA} offen offset:{2048*r}', 'kld')]))
        it.append(Item([(f'buffer_load_dwordx2 v[{A+4}:{A+5}], v{vL16}, {SRD_SK}, {sA} offen offset:{2048*r+16}', 'kld')]))
    return it
def k_copy(r, c, C, gap):
    A = K_A + 6*r; off = 32 + 2048*r + c*CV_KS
    if c == 0: return [Item([f'ds_write_b128 v{cKW}, v[{A}:{A+3}] offset:{off}'], gap=gap)]
    if c == 2: l = [f'v_mov_b32 v{C+i}, v{A+i+1}' for i in range(4)]
    else: l = [f'v_alignbit_b32 v{C+i}, v{A+i+1+(c>>1)}, v{A+i+(c>>1)}, 16' for i in range(4)]
    return [Item([x]) for x in l] + [Item([f'ds_write_b128 v{cKW}, v[{C}:{C+3}] offset:{off}'], gap=gap)]
def k_early_items(gap):
    it = []
    for n, (r, c) in enumerate([(0, 2), (0, 3), (1, 1), (1, 2), (1, 3)]): it += k_copy(r, c, K_C + 4*(n & 1), gap)
    return it
def k_late_items(gap):
    Z = K_Z; A = K_A; C1 = K_C
    it = [Item([f'v_mov_b32 v{Z+i}, 0']) for i in range(4)]
    it.append(Item(['s_mov_b32 exec_hi, 0xff', f'ds_write_b128 v{cZA}, v[{Z}:{Z+3}]', 's_mov_b64 exec, -1'], gap=gap))
    it += k_copy(0, 0, 0, gap) + k_copy(0, 1, C1, gap) + k_copy(1, 0, 0, gap)
    it.append(Item([f'v_lshlrev_b32 v{Z}, 16, v{A}', 's_mov_b64 exec, 1', f'ds_write_b32 v{cHW}, v{Z} offset:{CV_KS + 28}',
                    f'ds_write_b32 v{cHW}, v{A} offset:{2*CV_KS + 28}', f'ds_write_b32 v{cHW}, v{Z} offset:{3*CV_KS + 24}',
                    f'ds_write_b32 v{cHW}, v{C1} offset:{3*CV_KS + 28}', 's_mov_b64 exec, -1']))
    return it
def f1_poll_items():
    soff = sB
    return (poll_issue([f's_lshl_b32 {sB}, {sXCD}, 2', f's_lshr_b32 {sA}, {sJ}, 3', f's_add_u32 {sB}, {sB}, {sA}', f's_lshl_b32 {sB}, {sB}, {5+FS}',
                        f's_add_u32 {sB}, {sB}, {WS_F1}', f'v_and_b32 v{vFA}, 31, v0', f'v_lshlrev_b32 v{vFA}, {FS}, v{vFA}'], soff),
            poll_check(soff, 'f1'))
def u_dma_items():
    return [Item([f's_add_u32 {sA}, {sC4}, {WS_KVT}', f's_lshl_b32 {sB}, {sP}, 11', f's_add_u32 {sB}, {sB}, {sU}', f's_add_u32 m0, {sB}, 512',
                  (f'buffer_load_dwordx4 v{vL16}, {SRD_WS}, {sA} offen sc1 lds', 'udma'),
                  (f'buffer_load_dwordx4 v{vL16}, {SRD_WS}, {sA} offen offset:1024 sc1 lds', 'udma')])]

NW = len(WD_BLK)
def wd_dma(i):
    t = W_ORD[i]; blk = WD_BLK[i % NW]
    return Item([f's_lshl_b32 {sWT}, s{TT+t}, 4', f's_add_u32 m0, {sME}, {blk}',
                 (f'buffer_load_dwordx4 v{gWD}, {SRD_WD}, {sWT} offen lds', f'wd{t}'),
                 (f'buffer_load_dwordx4 v{gWD1}, {SRD_WD}, {sWT} offen offset:1024 lds', f'wd{t}')])
def wd_reads(i):
    t = W_ORD[i]; blk = WD_BLK[i % NW]
    vb, off = (gAe0, blk) if blk < 65536 else (gAl0, blk - 65536)
    r = [f'ds_read_b64_tr_b16 a[{8*t+4*al+2*m}:{8*t+4*al+2*m+1}], v{vb+al} offset:{off + 1024*m}' for al in range(2) for m in range(2)]
    return [Item([('@waitvm', f'wd{t}'), (r[0], f'wr{t}')])] + [Item([(x, f'wr{t}')]) for x in r[1:]]
def h_load(p):
    t = H_ORD[p]; ty, b = hslot(p % NH)
    return [Item([(f'buffer_load_dwordx4 {ty}[{b}:{b+3}], v{gH0}, {SRD_WS}, s{TT+t} offen sc1', f'h{p}')]),
            Item([(f'buffer_load_dwordx4 {ty}[{b+4}:{b+7}], v{gH1}, {SRD_WS}, s{TT+t} offen sc1', f'h{p}')])]

def g1_main(a):
    o = a.opts
    sc = Sched(a); a.sc = sc
    qd = sc.queue('vm', [], force=True)
    qp = sc.queue('valu', [])
    qg = sc.queue('gate', [])
    qs = sc.queue('setup', setup_late(o))
    def spread(items, b0, span):
        nv = sum(1 for it in items if any(t.startswith('buffer_') for t, _ in it.ins))
        i = 0
        for it in items:
            it.nb = b0 + (i*span)//max(nv, 1)
            if any(t.startswith('buffer_') for t, _ in it.ins): i += 1
        return items
    def at(items, nb):
        for it in items: it.nb = max(it.nb, nb)
        return items
    stamp(a, 0, 'pro')
    a.wait_vm('g1dma0')
    a('s_barrier')
    stamp_lazy(a, 'c0')
    for r in g1_reads(0): a(r[0], r[1])
    lf = o.get('lf', 1)
    qd['items'] += spread(a.pend1, 0, o.get('sp0', 6)) + spread(a.pend2, o.get('sp0', 6), o.get('sp1', 10))
    qd['items'] += spread(a.kvst + [nonce_load()], o.get('sp0', 6) + o.get('sp1', 10), 4)
    carry = []
    f1i, f1c = f1_poll_items()
    for k in range(28):
        c, ks = k >> 2, k & 3
        if k < 27: reads = g1_reads(k+1)
        else: reads = [g1_rdB(28+i, 4*i) for i in range(4)] + [x for i in range(4) for x in g1_rdA(28+i, 0, 16 + 4*i)]
        own = [[] for _ in range(7)]
        first = 0
        if ks == 3:
            def bar(a, c=c):
                stamp_lazy(a, f'b{c}in', 's[0:1]')
                a.wait_vm(f'g1dma{c+1}')
                a('s_waitcnt lgkmcnt(0)')
                flush_pending(a)
                a('s_barrier')
                stamp_lazy(a, f'b{c}out')
            sc.drain(qd, sc.beat - 1) if False else None
            own[0] = [Item([('@call', bar)], cost=5)]; first = 1
        nper = [3, 2, 2, 2, 2, 2, 2] if first == 0 else [0, 3, 3, 3, 2, 2, 2]
        if o.get('rd3'): nper = [3, 3, 3, 3, 3, 0, 0] if first == 0 else [0, 3, 3, 3, 3, 3, 0]
        pos = [g for g, n in enumerate(nper) for _ in range(n)]
        for i, r in enumerate(reads): own[pos[i]].append(r)
        for t in range(7):
            if ks == 3 and t == 0:
                tagneed = f'g1dma{c+1}'
                while any(g == tagneed for it in qd['items'] for _, g in it.ins): sc.emit(qd['items'].pop(0))
                if c == 4:
                    if qs['items']: print('note: setup items left at k=19:', len(qs['items']))
                    sc.drain(qs)
                if c == 5:
                    if qg['items']: print('note: gate items left at k=23:', len(qg['items']))
                    sc.drain(qg)
            buf = (k & 1)*32
            pre = {0: f'r{k}_2', 3: f'r{k}_6'}.get(t)
            sc.step(mfma32(G1ACC + 16*t, f'a[{buf+4*t}:{buf+4*t+3}]', f'a[{buf+28}:{buf+31}]', k == 0), own[t], cap=o.get('cap1', 5),
                    pre=pre, post=1 if t in (2, 6) else 0)
            if ks == 3 and t == 0:
                b = sc.beat
                ex = []
                if c == 0: ex = g_load_items()
                if c == 1:
                    ex = k_load_items()
                    if not o.get('nog'): qg['items'] += at([Item([('@waitvm', 'gld')])] + g_compute_items(), b + o.get('gb', 14))
                if c == 3 and o.get('wdpf', 1):
                    ex = [Item([f's_lshl_b32 {sA}, s2, 2', f's_add_u32 {sA}, {sA}, {sW}', f's_mul_i32 {sA}, {sA}, 1792']),
                          Item([(f'buffer_load_dwordx4 v[{vPF}:{vPF+3}], v{vL16}, {SRD_WD}, {sA} offen', 'pf')]),
                          Item([(f'buffer_load_dwordx4 v[{vPF}:{vPF+3}], v{vL16}, {SRD_WD}, {sA} offen offset:768', 'pf')])]
                if c == 2:
                    ex = [nonce_check(), f1_publish()]
                    qp['items'] += at([Item([('@waitvm', 'kld')])] + k_early_items(o.get('kgap', 6)), b + o.get('kb', 26))
                if lf:
                    nE = o.get('nE', 2)
                    spF = o.get('spF', 13) if carry else 0
                    items = spread(carry, b, spF)
                    nxt = (g1_lead(c + 3) if c + 3 < 8 else []) + ex
                    items += spread(nxt, b + spF, o.get('spL', 6))
                    if c + 3 < 8:
                        items += spread(g1_follow(c + 3)[:nE], b + o.get('bE', 22), 4)
                        carry = g1_follow(c + 3, nE)
                    else: carry = []
                    qd['items'] += items
                elif c + 3 < 8: qd['items'] += spread(ex + g1_lead(c + 3) + g1_follow(c + 3), b, o.get('sp', 22))
                if c == 5:
                    sc.drain(qp)
                    qp['items'] += at(k_late_items(o.get('kgap2', 4)), b)
                    wd = [wd_dma(i) for i in range(WD_N23)]
                    for i, it in enumerate(wd): it.nb = b + o.get('wd23', 16) + 4*i
                    f1i.nb = b + o.get('f1d', 14); qd['items'] += [f1i] + wd
                if c == 6:
                    if qp['items']: print('note: K items left at k=27:', len(qp['items']))
                    sc.drain(qp)
                    qd['items'] += at([f1c] + u_dma_items(), b + o.get('f1c', 2))
                    a.wdnext = WD_N23 + o.get('wdt', 5)
                    wd = [wd_dma(i) for i in range(WD_N23, a.wdnext)]
                    for i, it in enumerate(wd): it.nb = b + o.get('wd27', 4) + o.get('wd27p', 4)*i
                    qd['items'] += wd
        if k == 26: pass
    def epi(t):
        A = G1ACC + 16*t
        l = [f'v_max_f32 v{A+j}, 0, v{A+j}' for j in range(8)]
        l += [f'v_mul_f32 v{A+j}, v{A+j}, v{A+8+j}' for j in range(8)]
        l += [f'v_cvt_pk_bf16_f32 v{A+8+j}, v{A+2*j}, v{A+2*j+1}' for j in range(4)]
        if t == 4: l.append(f's_add_u32 {sHB}, {sHB}, 4096')
        l.append((f'buffer_store_dwordx4 v[{A+8}:{A+11}], v{vL16}, {SRD_WS}, {sHB} offen offset:{1024*(t%4)} sc1', 'hst'))
        return l
    for t in range(7):
        if t in (0, 2, 4): stamp(a, 0, f'tl{t}')
        ab = 16 if t % 2 == 0 else 32
        nb_ = 32 if t % 2 == 0 else 16
        rds = [x for i in range(4) for x in g1_rdA(28+i, t+1, nb_ + 4*i)] if t < 6 else []
        ep = epi(t-1) if t > 0 else []
        for i in range(4):
            own = rds[2*i:2*i+2]
            if i >= 1:
                n = -(-len(ep) // (4 - i)) if i < 3 else len(ep)
                if i == 1: n = min(n, 4)
                own = own + [Item([x]) for x in ep[:n]]; ep = ep[n:]
            sc.step(mfma32(G1ACC + 16*t, f'a[{ab+4*i}:{ab+4*i+3}]', f'a[{4*i}:{4*i+3}]', False), own, cap=o.get('capt', 6))
    sc.drain(qd)
    for x in epi(6): sc.emit(Item([x]))
    stamp(a, 0, 'g1end')

def conv_main(a):
    o = a.opts
    sc = Sched(a); a.sc = sc
    a.wait_vm('udma')
    a('s_waitcnt lgkmcnt(0)\ns_barrier')
    stamp_lazy(a, 'cvgo')
    def rdA(e):
        b = CV_AF + 4*(e % 8)
        return [f'ds_read_b64 v[{b}:{b+1}], v{cA} offset:{128*e}', f'ds_read_b64 v[{b+2}:{b+3}], v{cA} offset:{128*e+8}']
    def rdU(mu):
        b = CV_UF + 4*(mu + 3)
        return f'ds_read_b128 v[{b}:{b+3}], v{cU} offset:{128*(mu+3)}'
    LA = 3
    for e in range(LA):
        if e == 1:
            for n in range(8): a(rdU(4*n))
        for r in rdA(e): a(r)
    qf = sc.queue('flag', [])
    qw = sc.queue('wd', [], pace=o.get('pw', 0))
    qf['items'].append(Item([('@waitvm', 'hst'), ('@waitvm', 'gst'), f's_lshl_b32 {sA}, {sRB}, 2', f's_add_u32 {sA}, {sA}, {sW}', f's_lshl_b32 {sA}, {sA}, 4',
                             f's_add_u32 {sA}, {sA}, {sFS}', f's_lshl_b32 {sA}, {sA}, {FS}', f's_add_u32 {sA}, {sA}, {WS_F2}'] + flag_store(sA), nb=o.get('f2b', 70)))
    seq = [wd_dma(i) for i in range(a.wdnext, NW)]
    for i, it in enumerate(seq): it.nb = o.get('wdp', 3)*i
    b0 = o.get('wdr0', 2)
    for i in range(28):
        rd = wd_reads(i)
        for it in rd: it.nb = b0 + (i*o.get('wdrp', 18))//4
        seq += rd
        if i >= 1 and i - 1 + NW < 28:
            d = wd_dma(i - 1 + NW); d.ins = [('@waitlg', f'wr{W_ORD[i-1]}')] + d.ins; d.nb = rd[0].nb; seq.append(d)
    if o.get('nowd'): seq = []
    qw['items'] = seq
    a.qw = qw
    f2i = poll_issue([f's_lshl_b32 {sB}, {sSB}, {5+FS}', f's_lshl_b32 {sA}, {sW}, {2+FS}', f's_add_u32 {sB}, {sB}, {sA}', f's_add_u32 {sB}, {sB}, {WS_F2}',
                      f'v_bfe_u32 v{vFA}, v0, 2, 1', f'v_lshlrev_b32 v{vFA}, {4+FS}, v{vFA}', f'v_and_b32 v{vZ}, 3, v0', f'v_lshl_add_u32 v{vFA}, v{vZ}, {FS}, v{vFA}'], sB)
    f2i.nb = o.get('f2p', 105)
    qf['items'].append(f2i)
    for e in range(32):
        if e in (4, 8, 16): stamp(a, 0, f'cv{e}')
        fill = []
        if e + LA < 32: fill += rdA(e + LA)
        if e < 3: fill = [rdU(4*n - (e+1)) for n in range(8)] + fill
        ns = list(range(e >> 2, 8))
        per = -(-len(fill) // len(ns))
        for n in ns:
            b = CV_AF + 4*(e % 8); u = CV_UF + 4*(4*n - e + 3); A = CV_ACC + 4*n
            own = fill[:per]; fill = fill[per:]
            sc.step(f'v_mfma_f32_16x16x32_bf16 v[{A}:{A+3}], v[{b}:{b+3}], v[{u}:{u+3}], ' + ('0' if e == 0 else f'v[{A}:{A+3}]'), own, cap=o.get('capc', 2))
    stamp(a, 0, 'cvend')
    sc.drain(qf)
    sc.emit(poll_check(sB, 'f2'))
    a.hnext = o.get('hpre', 4)
    for t in range(a.hnext):
        for it in h_load(t): sc.emit(it)
    stamp(a, 0, 'f2ok')
    X, U2, E = 16, 32, 40
    A = CV_ACC
    for i in range(4): a(f'ds_read_b64 v[{U2+2*i}:{U2+2*i+1}], v{cDt} offset:{512*i}')
    L1 = a.newlabel('L_cvp1'); L2 = a.newlabel('L_cvp2')
    a(f's_cmp_lg_u32 {sP}, 0\ns_cbranch_scc1 {L1}')
    for i in range(4): a(f'ds_write_b128 v{cRW}, v[{A+16+4*i}:{A+19+4*i}] offset:{1024*i}')
    a(f's_branch {L2}')
    a.label(L1)
    for i in range(4): a(f'ds_write_b128 v{cRW}, v[{A+4*i}:{A+3+4*i}] offset:{1024*i}')
    for i in range(16): a(f'v_mov_b32 v{A+i}, v{A+16+i}')
    a.label(L2)
    a('s_waitcnt lgkmcnt(4)')
    for i in range(4):
        a(f'''v_and_b32 v{E+4*i}, 0xffff0000, v{U2+2*i+1}
              v_lshlrev_b32 v{E+4*i+1}, 16, v{U2+2*i+1}
              v_and_b32 v{E+4*i+2}, 0xffff0000, v{U2+2*i}
              v_lshlrev_b32 v{E+4*i+3}, 16, v{U2+2*i}''')
    a(f'v_lshlrev_b32 v{vD}, 16, v{vD}')
    for i in range(16): a(f'v_fmac_f32 v{A+i}, v{vD}, v{E+i}')
    a('s_waitcnt lgkmcnt(0)\ns_barrier')
    for i in range(4): a(f'ds_read_b128 v[{X+4*i}:{X+4*i+3}], v{cRR} offset:{1024*i}')
    for i in range(0, 16, 2): a(f'v_pk_add_f32 v[{A+i}:{A+i+1}], v[{A+i}:{A+i+1}], v[{X+i}:{X+i+1}]')
    for i in range(8): a(f'v_cvt_pk_bf16_f32 v{E+i}, v{A+2*i}, v{A+2*i+1}')
    for i in range(2):
        a(f'''v_permlane16_swap_b32 v{E+4*i}, v{E+4*i+2}
              v_permlane16_swap_b32 v{E+4*i+1}, v{E+4*i+3}''')
        a(f'buffer_store_dwordx4 v[{E+4*i}:{E+4*i+3}], v{cYS}, {SRD_WS}, 0 offen offset:{1024*i} sc1', tag='yst')
    stamp(a, 0, 'yst')

def g2_main(a):
    o = a.opts
    sc = Sched(a); a.sc = sc
    qw = sc.queue('wd', a.qw['items'])
    for it in qw['items']: it.nb = 0
    qh = sc.queue('h', [], pace=o.get('ph', 0))
    qx = sc.queue('x', [])
    T = 10
    QV, YV, AT = 224, 232, None
    x = []
    x.append(Item([('@waitvm', 'yst'), f's_lshl_b32 {sA}, {sXCD}, 1', f's_add_u32 {sA}, {sA}, {sP}', f's_lshl_b32 {sA}, {sA}, 5', f's_add_u32 {sA}, {sA}, {sJ}',
                   f's_lshl_b32 {sA}, {sA}, 1', f's_lshr_b32 {sB}, {sW}, 1', f's_add_u32 {sA}, {sA}, {sB}', f's_lshl_b32 {sA}, {sA}, {FS}',
                   f's_add_u32 {sA}, {sA}, {WS_F3}'] + flag_store(sA), nb=o.get('f3b', 36)))
    setup = [f's_xor_b32 {sU}, {sW}, 1', f's_lshl_b32 {sU}, {sU}, 12', f's_add_u32 {sU}, {sU}, {CV_RL}',
             f's_lshr_b32 {sK}, {sW}, 1',
             f'v_lshrrev_b32 v{T}, 2, v0', f'v_and_b32 v{T+1}, 3, v0',
             f'v_lshlrev_b32 v{gQ}, 10, v{T}', f'v_lshl_add_u32 v{gQ}, v{T+1}, 4, v{gQ}',
             f's_lshl_b32 {sA}, {sSB}, 1', f's_add_u32 {sA}, {sA}, {sP}', f's_lshl_b32 {sA}, {sA}, 15', f's_lshl_b32 {sB}, {sDB}, 7',
             f's_add_u32 {sA}, {sA}, {sB}', f's_lshl_b32 {sB}, {sK}, 6', f's_add_u32 {sA}, {sA}, {sB}',
             f'v_add_u32 v{gOS}, {sA}, v{gQ}', f'v_add_u32 v{gQ}, {BIAS}, v{gOS}',
             f'v_lshlrev_b32 v{gY}, 12, v{T}', f'v_lshrrev_b32 v{T+2}, 1, v{T+1}', f'v_lshl_add_u32 v{gY}, v{T+2}, 6, v{gY}',
             f'v_and_b32 v{T+2}, 1, v0', f'v_lshl_add_u32 v{gY}, v{T+2}, 4, v{gY}',
             f's_lshl_b32 {sA}, {sDB}, 1', f's_add_u32 {sA}, {sA}, {sK}', f's_lshl_b32 {sA}, {sA}, 17', f's_lshl_b32 {sB}, {sSB}, 7',
             f's_add_u32 {sA}, {sA}, {sB}', f's_lshl_b32 {sB}, {sP}, 5', f's_add_u32 {sA}, {sA}, {sB}', f's_add_u32 {sA}, {sA}, {WS_Y}',
             f'v_add_u32 v{gY}, {sA}, v{gY}',
             f'v_mul_u32_u24 v{gOR}, 80, v{T}', f'v_lshl_add_u32 v{gOR}, v{T+1}, 4, v{gOR}', f'v_add_u32 v{gOR}, {sU}, v{gOR}',
             f'v_and_b32 v{T}, 31, v0', f'v_lshrrev_b32 v{T+1}, 5, v0',
             f'v_lshlrev_b32 v{gQR}, 6, v{T}', f'v_lshl_add_u32 v{gQR}, v{T+1}, 3, v{gQR}', f'v_add_u32 v{gQR}, {sU}, v{gQR}',
             f'v_mul_u32_u24 v{gOW}, 80, v{T}', f'v_lshl_add_u32 v{gOW}, v{T+1}, 3, v{gOW}', f'v_add_u32 v{gOW}, {sU}, v{gOW}',
             f'v_lshlrev_b32 v{gGA}, 3, v{T}',
             f'v_bfe_u32 v{T+2}, v0, 2, 2', f'v_lshl_add_u32 v{T+1}, v{T+1}, 2, v{T+2}', f'v_lshlrev_b32 v{gYR}, 6, v{T+1}',
             f'v_bfe_u32 v{T+2}, v0, 1, 1', f'v_lshl_add_u32 v{gYR}, v{T+2}, 5, v{gYR}', f'v_bfe_u32 v{T+2}, v0, 4, 1',
             f'v_lshl_add_u32 v{gYR}, v{T+2}, 4, v{gYR}', f'v_and_b32 v{T+2}, 1, v0', f'v_lshl_add_u32 v{gYR}, v{T+2}, 3, v{gYR}',
             f'v_add_u32 v{gYR}, {sU}, v{gYR}', f'v_add_u32 v{gYR}, 2048, v{gYR}',
             f's_lshl_b32 {sA}, {sW}, 12', f's_add_u32 {sA}, {sA}, {G2_RL}', f'v_add_u32 v{gRR}, {sA}, v{vL16}']
    x += [Item([s]) for s in setup]
    x.append(Item([f's_mov_b32 m0, {sU}', (f'buffer_load_dwordx4 v{gQ}, {SRD_Q}, 0 offen lds', 'qy'), f'v_add_u32 v{T}, {16384-1024}, v{gQ}',
                   (f'buffer_load_dwordx4 v{T}, {SRD_Q}, 0 offen offset:1024 lds', 'qy')], nb=o.get('qb', 30)))
    f3i = poll_issue([f's_lshr_b32 {sA}, {sSB}, 4', f's_lshl_b32 {sB}, {sDB}, 1', f's_add_u32 {sB}, {sB}, {sA}', f's_lshl_b32 {sB}, {sB}, {6+FS}',
                      f's_lshl_b32 {sA}, {sK}, {5+FS}', f's_add_u32 {sB}, {sB}, {sA}', f's_add_u32 {sB}, {sB}, {WS_F3}',
                      f'v_and_b32 v{vFA}, 31, v0', f'v_lshlrev_b32 v{vFA}, {FS}, v{vFA}'], sB)
    f3i.nb = o.get('f3p', 88)
    x.append(f3i)
    x.append(Item([f's_lshl_b32 {sA}, {sSB}, 1', f's_add_u32 {sA}, {sA}, {sP}', f's_lshl_b32 {sA}, {sA}, 8', f's_add_u32 {sA}, {sA}, {WS_G}',
                   (f'buffer_load_dwordx2 v[{vG}:{vG+1}], v{gGA}, {SRD_WS}, {sA} offen sc1', 'gld2')]))
    f3c = poll_check(sB, 'f3'); f3c.nb = o.get('f3c', 108); x.append(f3c)
    x.append(Item([f's_add_u32 m0, {sU}, 2048', (f'buffer_load_dwordx4 v{gY}, {SRD_WS}, 0 offen sc1 lds', 'qy'), f'v_add_u32 v{T}, {65536-1024}, v{gY}',
                   (f'buffer_load_dwordx4 v{T}, {SRD_WS}, 0 offen offset:1024 sc1 lds', 'qy')]))
    qx['items'] = x
    for t in range(a.hnext, 28): qh['items'] += h_load(t)
    for i, it in enumerate(qh['items']):
        t = a.hnext + i//2
        it.nb = max(4*(t - o.get('lah', 8)), 0 if t < NH else 4*(t - NH) + 4)
    for p in range(28):
        t = H_ORD[p]
        while any(g == f'wr{t}' for it in qw['items'] for tt, g in it.ins if tt != '@waitlg'): sc.emit(qw['items'].pop(0))
        while any(g == f'h{p}' for it in qh['items'] for _, g in it.ins): sc.emit(qh['items'].pop(0))
        if p in (1, 7, 14, 21): stamp(a, 0, f'g2t{p}')
        ty, hb = hslot(p % NH)
        for sg in range(4):
            al, be = sg >> 1, sg & 1
            sc.step(mfma32(G2ACC + 16*sg, f'a[{8*t+4*al}:{8*t+4*al+3}]', f'{ty}[{hb+4*be}:{hb+4*be+3}]', p == 0), [], cap=o.get('cap2', 5))
    sc.drain(qw); sc.drain(qh); sc.drain(qx)
    stamp(a, 0, 'g2end')
    A = G2ACC
    QV, YV, AT, X = 80, 88, 96, 112
    a.wait_vm('qy')
    for m in range(4): a(f'ds_read_b64 v[{QV+2*m}:{QV+2*m+1}], v{gQR} offset:{16*m}')
    for m in range(4): a(f'ds_read_b64_tr_b16 v[{YV+2*m}:{YV+2*m+1}], v{gYR} offset:{512*m}')
    for sg in range(1, 4):
        a(f'''s_xor_b32 s3, {sW}, {sg}
              s_lshl_b32 s3, s3, 12
              s_add_u32 s3, s3, {G2_RL + (sg-1)*16384}
              v_add_u32 v{gRW}, s3, v{vL16}''')
        for m in range(4):
            b = A + 16*sg + 4*m
            a(f'ds_write_b128 v{gRW}, v[{b}:{b+3}] offset:{1024*m}')
    for i in range(8):
        a(f'''v_lshlrev_b32 v{AT+2*i}, 16, v{QV+i}
              v_and_b32 v{AT+2*i+1}, 0xffff0000, v{QV+i}
              v_lshlrev_b32 v{QV+i}, 16, v{YV+i}
              v_and_b32 v{YV+i}, 0xffff0000, v{YV+i}
              v_mul_f32 v{AT+2*i}, v{AT+2*i}, v{QV+i}
              v_mul_f32 v{AT+2*i+1}, v{AT+2*i+1}, v{YV+i}
              v_mul_f32 v{AT+2*i}, v{AT+2*i}, v{vG}
              v_mul_f32 v{AT+2*i+1}, v{AT+2*i+1}, v{vG}''')
    a('s_waitcnt lgkmcnt(0)\ns_barrier')
    stamp_lazy(a, 'red')
    for sg in range(1, 4):
        for m in range(4):
            b = X + 16*(sg-1) + 4*m
            a(f'ds_read_b128 v[{b}:{b+3}], v{gRR} offset:{(sg-1)*16384 + 1024*m}')
    for sg in range(1, 4):
        for i in range(0, 16, 2):
            b = X + 16*(sg-1) + i
            a(f'v_pk_add_f32 v[{A+i}:{A+i+1}], v[{A+i}:{A+i+1}], v[{b}:{b+1}]')
    for i in range(16): a(f'v_fmac_f32 v{AT+i}, v{A+i}, v{vG+1}')
    for i in range(8): a(f'v_cvt_pk_bf16_f32 v{A+i}, v{AT+2*i}, v{AT+2*i+1}')
    for m in range(4): a(f'ds_write_b64 v{gOW}, v[{A+2*m}:{A+2*m+1}] offset:{16*m}')
    osc = {0: '', 1: 'sc1', 2: 'nt', 3: 'sc0 sc1'}[o.get('osc', 0)]
    a(f'''ds_read_b128 v[{X}:{X+3}], v{gOR}
          ds_read_b128 v[{X+4}:{X+7}], v{gOR} offset:{16*80}
          s_mov_b32 s3, 16384
          buffer_store_dwordx4 v[{X}:{X+3}], v{gOS}, {SRD_OUT}, 0 offen {osc}
          buffer_store_dwordx4 v[{X+4}:{X+7}], v{gOS}, {SRD_OUT}, s3 offen {osc}''')

def build(opts, outname='x'):
    a = Asm(); a.opts = opts; a.outname = outname
    kname = NAME + '_kernel'
    if opts.get('stamps'): a('s_memrealtime s[92:93]' if not opts.get('cyc') else 's_memtime s[92:93]')
    prologue(a)

    g1_main(a); conv_main(a); g2_main(a)
    if opts.get('stamps'): a.fence()
    stamp(a, 0, 'end'); stamp_flush(a)
    a.label('L_end'); a('s_endpgm')
    body = finalize(a)
    hdr = open('cdna_kernels/' + NAME + '.s.ref').read().split('; Override launch')[0]
    diag = 'diaga' in opts
    out = [hdr.rstrip(), '; Single persistent launch: 256 workgroups (one per CU), phases chained by flags in d_ws.']
    if diag:
        from gen import diag_body
        out.append(f'; @launch kernel={kname} grid=(256,1,1) block=(256,1,1) lds={LDS_TOTAL}')
        out.append(f'; @launch kernel=diag_kernel grid=(256,1,1) block=(256,1,1) lds=0')
    else:
        out.append(f'; @launch grid=(256,1,1) block=(256,1,1) lds={LDS_TOTAL}')
    out.append(f'''.amdgcn_target "amdgcn-amd-amdhsa--gfx950"
.text
.globl {kname}
.p2align 8
.type {kname},@function
{kname}:
{body}''')
    names = [kname]
    if diag:
        out.append(f'.globl diag_kernel\n.p2align 8\n.type diag_kernel,@function\ndiag_kernel:\n' + diag_body(opts['diaga'], opts['diagb'], opts.get('mult', 10)))
        names.append('diag_kernel')
    out.append('.section .rodata,"a"')
    for n in names:
        out.append(f'''.p2align 6
.amdhsa_kernel {n}
  .amdhsa_next_free_vgpr 512
  .amdhsa_next_free_sgpr 102
  .amdhsa_accum_offset 256
  .amdhsa_group_segment_fixed_size 0
  .amdhsa_kernarg_size 112
  .amdhsa_user_sgpr_count 2
  .amdhsa_user_sgpr_kernarg_segment_ptr 1
  .amdhsa_system_sgpr_workgroup_id_x 1
  .amdhsa_float_denorm_mode_32 3
.end_amdhsa_kernel''')
    return '\n'.join(out) + '\n'

if __name__ == '__main__':
    opts = {k: int(v) for k, v in (kv.split('=') for kv in sys.argv[2:])}
    txt = build(opts, sys.argv[1])
    open(sys.argv[1], 'w').write(txt)
    c = stats(txt)
    print(len(txt), 'bytes;', sum(c.values()), 'instr;', 's_nop', c['s_nop'], 's_waitcnt', c['s_waitcnt'])
```

```python
import sys
from asmlib import *

NAME = 'gated_mix__ssm_conv_h3__glu_gated_reglu__prompt'
S, D, F = 2048, 512, 1792
WS_KVT = 0
WS_Y = 2 << 20
WS_H = 4 << 20
WS_G = 12 << 20
WS_F1 = 13 << 20
WS_F2 = WS_F1 + 0x10000
WS_F3 = WS_F1 + 0x20000
FS = 6
WS_STAMP = 14 << 20
WS_SIZE = 16 << 20
LDS_TOTAL = 163840
OPT = {}

sW, sXCD, sJ = 's4', 's5', 's6'
sT = 's7'
SRD_Q, SRD_K, SRD_V, SRD_SH, SRD_SK, SRD_W, SRD_WD, SRD_GW, SRD_OUT, SRD_WS, SRD_DBG = \
    ['s[%d:%d]' % (8 + 4 * i, 11 + 4 * i) for i in range(11)]
sD = 's52'
sL1, sL2 = 's100', 's7'
sP = 's53'
sRB, sFS = 's54', 's55'
TT = 56
sX = ['s84', 's85', 's86']
sWC = 's3'
BIAS = 4096
sMX, sMW = 's87', 's88'
sHB = 's89'
sA, sB = 's90', 's91'
sSB, sDB = 's94', 's95'
sU, sK = 's96', 's97'
sC4 = 's98'
sME = 's99'
sWT = 's101'
sSPIN = 's1'

vL16 = 1
vN = 2
vF = 4
vFA = 6
vZ = 7
vG = 8
vD = 249
vPF = 250
G1ACC = 16
XR, WR, XD, WD = 144, 148, 156, 160
G_T = 168
K_A, K_C, K_Z = 184, 196, 204
P_SH, P_H, P_P, P_V, P_KF, P_W = 168, 170, 174, 184, 192, 212
(pKO, pTR, pSHA, pLW, pLR, pST, cA, cU, cDt, cKW, cZA, cRW, cRR, cYS,
 gWD, gWD1, gAe0, gAe1, gAl0, gAl1, gH0, gH1, gQ, gY, gQR, gYR, gRW, gRR, gOW, gOR, gOS, gGA, cHW) = range(216, 249)
cUZ = 13
pHA = 14
CV_UF, CV_AF, CV_ACC = 16, 144, 176
G2ACC = 16
G2AT = 224
def hslot(i):
    if i < 4: return 'a', 224 + 8*i
    if i == 4: return 'v', 208
    return 'v', 80 + 8*(i - 5)
NH = 21

G1_XS, G1_WB, G1_WS = 16384, 49152, 32768
SPARE = G1_WB + 3*G1_WS
P0_K, P0_V, P0_T = SPARE, SPARE + 8192, SPARE
CV_U, CV_KS = 4608, 4160
CV_K = 4*CV_KS
CV_UL = SPARE
CV_KL = G1_WB + 2*G1_WS - 2*CV_K
CV_RL = G1_XS
CV_DUMMY = 65536
WD_BLK = [32768, 40960, 114688, 122880, 131072, 139264, 0, 8192, 49152, 57344]
WD_N23 = 6
WD_HI = 81920
G2_RL = 65536
W_ORD = [0, 4, 8, 1, 2, 3, 12, 5, 6, 7, 16, 9, 10, 11, 20, 13, 14, 15, 24, 17, 18, 19, 21, 22, 23, 25, 26, 27]
H_ORD = [0, 1] + [4*b for b in range(1, 7)] + [2] + [4*b + 1 for b in range(1, 7)] + [3] + [4*b + 2 for b in range(1, 7)] + [4*b + 3 for b in range(1, 7)]
H_ORD1 = [0, 1, 2, 3] + [4*b + i for i in range(4) for b in range(1, 7)]
W_ORD1 = [4*b for b in range(7)] + [4*b + i for b in range(7) for i in range(1, 4)]
assert sorted(W_ORD) == list(range(28)) and sorted(H_ORD) == list(range(28))

class Item:
    def __init__(self, ins, nb=0, cost=None, gap=0):
        self.ins = [(i, None) if isinstance(i, str) else i for i in ins]
        self.nb = nb; self.gap = gap
        self.cost = cost if cost is not None else sum(1 for t, _ in self.ins if not t.startswith('@') or t in ('@waitvm',))

class Sched:
    def __init__(self, a):
        self.a = a; self.q = []; self.beat = 0
    def queue(self, name, items, pace=0, force=False):
        q = dict(name=name, items=list(items), pace=pace, ok=0, force=force); self.q.append(q); return q
    def emit(self, it):
        a = self.a
        for t, g in it.ins:
            if t == '@waitvm': a.wait_vm(g)
            elif t == '@waitlg': a.wait_lg(g)
            elif t == '@call': g(a)
            else: a(t, g)
    def step(self, mfma, own=(), cap=5, pre=None, post=0):
        a = self.a
        if pre: a.wait_lg(pre)
        a(mfma)
        used = post
        for o in own:
            if isinstance(o, Item): self.emit(o); used += o.cost
            elif isinstance(o, tuple): a(o[0], o[1]); used += 1
            else: a(o); used += 1
        for q in self.q:
            while q['force'] and q['items'] and q['items'][0].nb <= self.beat:
                it = q['items'].pop(0); self.emit(it); used += it.cost
        progress = True
        while progress:
            progress = False
            for q in self.q:
                if not q['force'] and q['items'] and q['items'][0].nb <= self.beat and q['ok'] <= self.beat:
                    it = q['items'][0]
                    if used + it.cost <= cap or (it.cost > cap - 2 and used <= min(2, cap - 1)):
                        q['items'].pop(0); self.emit(it); used += it.cost
                        vm = any(t.startswith('buffer_') for t, _ in it.ins)
                        q['ok'] = self.beat + max(q['pace'] if vm else 0, it.gap); progress = True
                        break
        self.beat += 1
    def drain(self, q, upto=None):
        while q['items'] and (upto is None or q['items'][0].nb <= upto):
            self.emit(q['items'].pop(0))

KEY = ('c0', 'b2out', 'b4out', 'b6out', 'g1end', 'cvgo', 'cvend', 'yst', 'g2end', 'red', 'end')
def stamp(a, i, name=None):
    if not a.opts.get('stamps'): return
    if a.opts['stamps'] == 2 and name not in KEY: return
    flush_pending(a)
    i = a.nstamp; a.nstamp += 1; a.names.append(name or str(i))
    a(f"""{'s_memtime' if a.opts.get('cyc') else 's_memrealtime'} s[92:93]
          s_waitcnt lgkmcnt(0)
          v_writelane_b32 v255, s92, {i}""")
def stamp_lazy(a, name, reg='s[92:93]'):
    if not a.opts.get('stamps'): return
    if a.opts['stamps'] == 2 and name not in KEY: return
    i = a.nstamp; a.nstamp += 1; a.names.append(name)
    I = Ins(f"{'s_memtime' if a.opts.get('cyc') else 's_memrealtime'} {reg}"); I.kind = 'salu'; a.add(I)
    a.pending.append((i, reg.split('[')[1].split(':')[0]))
def flush_pending(a):
    if not a.opts.get('stamps') or not a.pending: return
    a('s_waitcnt lgkmcnt(0)')
    for i, r in a.pending: a(f'v_writelane_b32 v255, s{r}, {i}')
    a.pending = []
def stamp_item(i):
    return Item([('@call', lambda a: stamp(a, i))], cost=0)
def stamp_flush(a):
    if not a.opts.get('stamps'): return
    flush_pending(a)
    a(f"""s_lshl_b32 s92, s2, 2
          s_add_u32 s92, s92, {sW}
          s_lshl_b32 s92, s92, 8
          s_add_u32 s92, s92, {WS_STAMP}
          v_lshlrev_b32 v254, 2, v0
          buffer_store_dword v255, v254, {SRD_WS}, s92 offen""")
    print('STAMPS', len(a.names), ' '.join(a.names))
    open(a.outname + '.names', 'w').write(' '.join(a.names))

def entry_stub(opts):
    st = ('s_memtime' if opts.get('cyc') else 's_memrealtime') + ' s[92:93]\n' if opts.get('stamps') else ''
    return st + f"""s_cmp_ge_u32 s2, 256
    s_cbranch_scc1 L_end
    s_load_dwordx16 s[56:71], s[0:1], 0
    s_load_dwordx8 s[72:79], s[0:1], 64
    s_load_dwordx4 s[80:83], s[0:1], 96
    s_memrealtime s[94:95]
    v_lshrrev_b32 v1, 6, v0
    s_and_b32 {sXCD}, s2, 7
    v_readfirstlane_b32 {sW}, v1
    s_lshr_b32 {sJ}, s2, 3
    v_and_b32 v0, 63, v0
    v_lshlrev_b32 v{vL16}, 4, v0
    s_cmp_ge_u32 {sJ}, 24
    s_cbranch_scc1 L_light
"""

def srd(a, base, lo, size):
    a(f"""s_mov_b32 s{base}, s{lo}
          s_mov_b32 s{base+1}, s{lo+1}
          s_mov_b32 s{base+2}, {size}
          s_mov_b32 s{base+3}, 0x20000""")

def emit(a, items):
    sc = Sched(a)
    for it in items: sc.emit(it)

XG = [[0, 3, 1, 2], [1, 3, 2, 0], [2, 3, 0, 1], [0, 1, 2, 3]]
def pack2(l): return sum(v << (2*i) for i, v in enumerate(l))
XG_LIT = sum(pack2(g) << (8*i) for i, g in enumerate(XG))
XI_LIT = sum(pack2([g.index(k) for k in range(4)]) << (8*i) for i, g in enumerate(XG))

def setup_g1_dma(a):
    o = a.opts; NT = a.NT; T = G_T
    a(f"""s_and_b32 {sRB}, {sXCD}, 1
          s_lshl_b32 {sRB}, {sRB}, 3
          s_and_b32 {sK}, {sJ}, 7
          s_add_u32 {sRB}, {sRB}, {sK}
          s_lshr_b32 {sFS}, {sXCD}, 1
          s_mul_i32 {sB}, {sFS}, 896
          s_lshl_b32 {sFS}, {sFS}, 2
          s_lshr_b32 {sU}, {sJ}, 3
          s_add_u32 {sFS}, {sFS}, {sU}
          s_lshl_b32 s3, {sU}, 8
          s_add_u32 {sB}, {sB}, s3
          s_add_u32 {sB}, {sB}, {BIAS}
          s_lshl_b32 {sU}, {sU}, 3
          s_and_b32 {sP}, {sW}, 1
          s_lshr_b32 {sT}, {sW}, 1""")
    if o.get('rot', 2) == 2:
        a(f's_and_b32 {sX[0]}, {sXCD}, 6\ns_and_b32 s3, {sXCD}, 1\ns_lshl_b32 s3, s3, 2\ns_add_u32 {sX[0]}, {sX[0]}, s3\ns_and_b32 {sX[0]}, {sX[0]}, 7')
    else: a(f's_mov_b32 {sX[0]}, 0')
    if not o.get('lf', 1): a(f's_mov_b32 {sK}, 0')
    a(f"""s_lshl_b32 {sX[0]}, {sX[0]}, 7
          s_add_u32 {sX[1]}, {sX[0]}, 128
          s_and_b32 {sX[1]}, {sX[1]}, 1023
          s_add_u32 {sX[2]}, {sX[1]}, 128
          s_and_b32 {sX[2]}, {sX[2]}, 1023
          s_lshl_b32 {sA}, {sRB}, 17
          s_lshl_b32 s3, {sW}, 15
          s_add_u32 {sA}, {sA}, s3
          s_add_u32 {sA}, {sA}, {BIAS}
          s_lshr_b32 {sWT}, {XG_LIT}, {sU}
          v_lshrrev_b32 v{T}, 3, v0
          v_lshrrev_b32 v{T+1}, 4, v0
          v_and_b32 v{T+2}, 7, v0
          v_xor_b32 v{T+1}, v{T+1}, v{T+2}
          v_xor_b32 v{T+2}, 4, v{T+1}
          v_add_u32 v{T+1}, {sK}, v{T+1}
          v_add_u32 v{T+2}, {sK}, v{T+2}
          v_and_b32 v{T+1}, 7, v{T+1}
          v_and_b32 v{T+2}, 7, v{T+2}
          v_lshlrev_b32 v{T}, 10, v{T}
          v_lshl_add_u32 v{T+1}, v{T+1}, 4, v{T}
          v_lshl_add_u32 v{T+2}, v{T+2}, 4, v{T}""")
    def xd(i):
        a(f"""s_bfe_u32 s3, {sWT}, {(2 << 16) | (2*i)}
              s_lshl_b32 s3, s3, 13
              s_add_u32 s3, s3, {sA}
              s_sub_u32 s3, s3, {1024*i}
              v_add_u32 v{XD+i}, s3, v{T+1+(i&1)}""")
    xd(0); xd(1)
    if NT == 4:
        a(f"""v_lshrrev_b32 v{T+3}, 4, v0
              s_lshl_b32 s3, {sT}, 2
              v_or_b32 v{T+4}, s3, v{T+3}
              v_bfe_u32 v{T+5}, v0, 1, 3
              v_xor_b32 v{T+4}, v{T+4}, v{T+5}
              s_lshl_b32 s3, {sP}, 2
              v_add_u32 v{T+3}, s3, v{T+3}""")
    else:
        a(f"""v_lshrrev_b32 v{T+3}, 3, v0
              s_lshl_b32 s3, {sT}, 1
              v_bfe_u32 v{T+4}, v0, 4, 1
              v_or_b32 v{T+4}, s3, v{T+4}
              v_bfe_u32 v{T+5}, v0, 1, 2
              v_xor_b32 v{T+4}, v{T+4}, v{T+5}""")
    a(f"""v_mul_u32_u24 v{T+3}, 3584, v{T+3}
          v_lshl_add_u32 v{T+3}, v{T+4}, 5, v{T+3}
          v_and_b32 v{T+4}, 1, v0
          v_lshl_add_u32 v{T+3}, v{T+4}, 4, v{T+3}
          v_add_u32 v{T+3}, {sB}, v{T+3}""")
    def wd(u):
        if NT == 4: a(f's_add_u32 s3, {sK}, {u}')
        else: a(f's_add_u32 s3, {sK}, {sP}\ns_add_u32 s3, s3, {2*u}')
        a(f's_and_b32 s3, s3, 7\ns_mul_i32 s3, s3, {8*3584}')
        if u & 1: a(f's_sub_u32 s3, s3, 2048')
        a(f'v_add_u32 v{WD+u}, s3, v{T+3}')
    wd(0)
    a(f"""s_lshl_b32 {sMW}, {sT}, {14 if NT == 4 else 13}
          s_lshl_b32 s3, {sP}, 10
          s_add_u32 {sMW}, {sMW}, s3
          s_add_u32 {sMW}, {sMW}, {G1_WB}
          s_lshl_b32 {sMX}, {sW}, 12""")
    def rest():
        xd(2); xd(3)
        for u in range(1, 2*NT): wd(u)
    return rest

def srd_qw(a):
    a(f"""s_sub_u32 s8, s56, {BIAS}
          s_subb_u32 s9, s57, 0
          s_mov_b32 s10, {S*D*2 + BIAS}
          s_mov_b32 s11, 0x20000
          s_cmp_lt_u32 {sW}, 2
          s_cselect_b32 s28, s70, s72
          s_cselect_b32 s29, s71, s73
          s_sub_u32 s28, s28, {BIAS}
          s_subb_u32 s29, s29, 0
          s_mov_b32 s30, {D*F*2 + BIAS}
          s_mov_b32 s31, 0x20000""")

def nonce_store(a):
    srd(a, 48, 80, 256)
    a(f"""s_or_b32 s3, s2, {sW}
          s_cmp_eq_u32 s3, 0
          s_cselect_b32 s3, 0, 0x1000
          v_mov_b32 v{vFA}, s3
          s_or_b32 s94, s94, 1
          v_mov_b32 v{vN}, s94
          v_mov_b32 v{vN+1}, s95
          s_mov_b64 exec, 1
          buffer_store_dwordx2 v[{vN}:{vN+1}], v{vFA}, {SRD_DBG}, 0 offen sc1
          s_mov_b64 exec, -1""")
    a(f"""s_lshl_b32 s3, {sXCD}, 7
          s_lshl_b32 {sD}, {sJ}, 2
          s_add_u32 s3, s3, {sD}
          s_and_b32 {sD}, {sW}, 2
          s_add_u32 s3, s3, {sD}
          v_mov_b32 v{vZ}, s3""")
    a(f'global_load_ushort v{vD}, v{vZ}, s[66:67]', 'dld')

def kv_prefetch(a):
    T = G_T + 12
    rot = a.opts.get('cbrot', 1)
    a(f"""v_lshrrev_b32 v{T}, 3, v0
          v_lshlrev_b32 v{T}, 10, v{T}
          v_and_b32 v{T+1}, 7, v0
          v_lshl_add_u32 v{T}, v{T+1}, 4, v{T}
          s_lshl_b32 s3, {sW}, 13
          v_add_u32 v{T}, s3, v{T}
          s_sub_u32 {sB}, {sJ}, 24
          s_mul_i32 {sB}, {sB}, 3""")
    for t in range(3):
        a(f"""s_add_u32 s3, {sXCD}, {sB if rot else 0}
              s_and_b32 s3, s3, 7
              s_lshl_b32 s3, s3, 7
              s_lshl_b32 {sA}, {sB}, 16
              s_add_u32 {sA}, {sA}, s3
              s_add_u32 s3, {sA}, 32768
              s_add_u32 {sB}, {sB}, 1""")
        for so in (sA, 's3'):
            a(f'buffer_load_dwordx4 v[{vPF}:{vPF+3}], v{T}, {SRD_K}, {so} offen', 'pf')
            a(f'buffer_load_dwordx4 v[{vPF}:{vPF+3}], v{T}, {SRD_V}, {so} offen', 'pf')
def wd3_prefetch_items():
    return [Item([f's_lshl_b32 {sA}, {sJ}, 2', f's_add_u32 {sA}, {sA}, {sW}', f's_lshl_b32 {sA}, {sA}, 14', f's_add_u32 {sA}, {sA}, 384',
                  f'v_lshrrev_b32 v{vZ}, 3, v0', f'v_lshlrev_b32 v{vZ}, 10, v{vZ}', f'v_and_b32 v{vFA}, 7, v0', f'v_lshl_add_u32 v{vZ}, v{vFA}, 4, v{vZ}',
                  (f'buffer_load_dwordx4 v[{vPF}:{vPF+3}], v{vZ}, {SRD_WD}, {sA} offen', 'pf')]),
            Item([f's_add_u32 {sA}, {sA}, 8192', (f'buffer_load_dwordx4 v[{vPF}:{vPF+3}], v{vZ}, {SRD_WD}, {sA} offen', 'pf')])]
def sk_prefetch_items():
    it = [Item([f's_sub_u32 {sA}, {sJ}, 24', f's_lshl_b32 {sA}, {sA}, 2', f's_add_u32 {sA}, {sA}, {sW}', f's_mul_i32 {sA}, {sA}, 6144',
                f's_lshl_b32 {sB}, {sXCD}, 18', f's_add_u32 {sA}, {sA}, {sB}'])]
    for i in range(6):
        if i == 4: it.append(Item([f's_add_u32 {sA}, {sA}, 4096']))
        it.append(Item([(f'buffer_load_dwordx4 v[{vPF}:{vPF+3}], v{vL16}, {SRD_SK}, {sA} offen offset:{1024*(i%4)}', 'pf')]))
    it.append(Item([(f'buffer_load_dwordx4 v[{vPF}:{vPF+3}], v{vL16}, {SRD_GW}, 0 offen', 'pf')]))
    return it

def setup_common(a):
    o = a.opts
    srd(a, 24, 64, D*S*2); srd(a, 32, 74, F*D*2); srd(a, 36, 76, D*2); srd(a, 40, 78, S*D*2); srd(a, 44, 82, WS_SIZE)
    setup_rest(a)
    emit(a, setup_late(o))

def prologue(a):
    o = a.opts; NT = a.NT
    rest = setup_g1_dma(a)
    a('s_waitcnt lgkmcnt(0)')
    if o.get('stamps'):
        a('v_writelane_b32 v255, s92, 0'); a.nstamp = 1; a.names = ['start']; a.pending = []
    srd_qw(a)
    nl = o.get('nlead', 3)
    for c in range(nl): emit(a, g1_lead(a, c))
    if o.get('pst'): stamp(a, 0, 'iss')
    rest()
    nonce_store(a)
    srd(a, 12, 58, S*D*2); srd(a, 16, 60, S*D*2); srd(a, 20, 62, D*8)
    setup_p0(a)
    setup_common(a)
    a.earlyp0 = NT == 2 and o.get('lp0', 1)
    if a.earlyp0: emit(a, p0_dma_items())
    if NT == 2 and o.get('kvpf', 1): kv_prefetch(a)
    stamp(a, 0, 'setup')
    emit(a, g1_follow(a, 0))
    n1 = o.get('f1pre', 3)
    emit(a, g1_follow(a, 1)[:n1])
    a.pend1 = g1_follow(a, 1, n1); a.pend2 = (g1_lead(a, 2) if nl < 3 else []) + g1_follow(a, 2)
    if a.earlyp0:
        emit(a, [nonce_load()])
        a.wait_vm('p0dma'); a('s_barrier')
        va, tr, st = p0_compute()
        emit(a, va)
        emit(a, a.pend1); a.pend1 = []
        a('s_waitcnt lgkmcnt(0)\ns_barrier')
        emit(a, tr + st)

def setup_p0(a):
    T = G_T + 8
    a(f"""s_add_u32 {sL1}, {sXCD}, {sJ if a.opts.get('cbrot', 1) else 0}
          s_and_b32 {sL1}, {sL1}, 7
          v_lshrrev_b32 v{T}, 3, v0
          v_and_b32 v{T+1}, 7, v0
          v_lshlrev_b32 v{T+2}, 10, v{T}
          v_lshl_add_u32 v{T+2}, v{T+1}, 4, v{T+2}
          s_lshl_b32 s3, {sJ}, 16
          s_lshl_b32 {sD}, {sL1}, 7
          s_add_u32 s3, s3, {sD}
          v_add_u32 v{pKO}, s3, v{T+2}
          s_lshl_b32 {sD}, {sW}, 5
          s_add_u32 s3, s3, {sD}
          s_sub_u32 s3, s3, 3072
          v_lshl_add_u32 v{pHA}, v0, 1, s3
          v_lshrrev_b32 v{T+2}, 4, v0
          v_lshlrev_b32 v{pTR}, 11, v{T+2}
          v_bfe_u32 v{T+3}, v0, 2, 2
          v_lshl_add_u32 v{pTR}, v{T+3}, 7, v{pTR}
          v_and_b32 v{T+3}, 3, v0
          v_lshl_add_u32 v{pTR}, v{T+3}, 3, v{pTR}
          s_lshl_b32 s3, {sW}, 5
          s_add_u32 s3, s3, {P0_K - 512}
          v_add_u32 v{pTR}, s3, v{pTR}
          v_and_b32 v{T+3}, 15, v0
          s_lshl_b32 s3, {sL1}, 9
          s_lshl_b32 {sD}, {sW}, 7
          s_add_u32 s3, s3, {sD}
          v_lshl_add_u32 v{pSHA}, v{T+3}, 3, s3
          v_mul_u32_u24 v{pLW}, 144, v{T+3}
          v_lshl_add_u32 v{pLW}, v{T+2}, 5, v{pLW}
          s_mul_i32 s3, {sW}, 2304
          s_add_u32 s3, s3, {P0_T}
          v_add_u32 v{pLW}, s3, v{pLW}
          v_mul_u32_u24 v{pLR}, 144, v{T}
          v_lshl_add_u32 v{pLR}, v{T+1}, 4, v{pLR}
          v_add_u32 v{pLR}, s3, v{pLR}
          v_lshlrev_b32 v{pST}, 12, v{T}
          v_lshl_add_u32 v{pST}, v{T+1}, 4, v{pST}
          s_lshl_b32 s3, {sL1}, 18
          s_lshl_b32 {sD}, {sW}, 16
          s_add_u32 s3, s3, {sD}
          s_lshl_b32 {sD}, {sJ}, 7
          s_add_u32 s3, s3, {sD}
          s_add_u32 s3, s3, {WS_KVT}
          v_add_u32 v{pST}, s3, v{pST}""")

def setup_rest(a):
    T = G_T + 8
    NT = a.NT
    a(f"""s_lshr_b32 s3, {XI_LIT}, {sU}
          v_bfe_u32 v{T}, v0, 3, 2
          v_lshlrev_b32 v{T}, 1, v{T}
          v_lshrrev_b32 v{T}, v{T}, s3
          v_and_b32 v{T}, 3, v{T}
          v_and_b32 v{T+1}, 7, v0
          v_lshl_add_u32 v{T}, v{T}, 3, v{T+1}
          v_lshrrev_b32 v{T+1}, 5, v0
          v_bfe_u32 v{T+2}, v{T}, 1, 3
          v_xor_b32 v{T+1}, v{T+1}, v{T+2}
          v_lshlrev_b32 v{T}, 7, v{T}
          v_lshl_add_u32 v{T}, v{T+1}, 4, v{T}
          s_lshr_b32 {sT}, {sW}, 1
          s_lshl_b32 s3, {sT}, 13
          v_add_u32 v{XR}, s3, v{T}
          v_xor_b32 v{XR+1}, 32, v{XR}
          v_xor_b32 v{XR+2}, 64, v{XR}
          v_xor_b32 v{XR+3}, 96, v{XR}
          v_bfe_u32 v{T}, v0, 4, 1
          v_lshrrev_b32 v{T+1}, 5, v0
          v_bfe_u32 v{T+2}, v0, 2, 2
          v_lshl_add_u32 v{T+1}, v{T+1}, 3, v{T+2}
          v_and_b32 v{T+3}, 3, v0
          v_lshlrev_b32 v{T+3}, 3, v{T+3}""")
    if NT == 4:
        a(f"""v_lshl_add_u32 v{T+3}, v{T+1}, 8, v{T+3}
              v_lshl_add_u32 v{T+3}, v{T}, 14, v{T+3}
              v_lshl_add_u32 v{T+2}, v{T}, 2, v{T+2}
              s_lshl_b32 s3, {sP}, 2""")
    else:
        a(f"""v_lshl_add_u32 v{T+3}, v{T+1}, 7, v{T+3}
              v_lshl_add_u32 v{T+3}, v{T}, 13, v{T+3}
              v_lshrrev_b32 v{T+2}, 1, v{T+2}
              v_lshl_add_u32 v{T+2}, v{T}, 1, v{T+2}
              s_lshl_b32 s3, {sP}, 1""")
    a(f"""v_xor_b32 v{T+2}, s3, v{T+2}
          v_lshl_add_u32 v{T+3}, v{T+2}, 5, v{T+3}
          v_add_u32 v{WR}, {G1_WB}, v{T+3}""")
    for tt in range(1, NT): a(f'v_xor_b32 v{WR+tt}, {32*tt}, v{WR}')
    for tt in range(NT): a(f'v_add_u32 v{WR+4+tt}, {2*G1_WS}, v{WR+tt}')
    a(f"""s_lshl_b32 s3, {sRB}, 1
          s_add_u32 s3, s3, {sT}
          s_mul_i32 s3, s3, 224
          s_mul_i32 {sT}, {sFS}, 7
          s_add_u32 s3, s3, {sT}
          s_and_b32 {sT}, {sFS}, 3
          s_add_u32 s3, s3, {sT}
          s_mul_i32 {sT}, {sP}, {NT}
          s_add_u32 s3, s3, {sT}
          s_lshl_b32 s3, s3, 10
          s_add_u32 {sHB}, s3, {WS_H}""")
    Z = T
    a(f'''s_lshr_b32 {sT}, {sW}, 1
          s_mul_i32 {sU}, {sT}, {CV_U}
          s_add_u32 {sU}, {sU}, {CV_UL}
          s_mul_i32 {sK}, {sT}, {CV_K}
          s_add_u32 {sK}, {sK}, {CV_KL}
          s_lshl_b32 {sC4}, {sXCD}, 6
          s_lshl_b32 s3, {sJ}, 1
          s_add_u32 {sC4}, {sC4}, s3
          s_add_u32 {sC4}, {sC4}, {sT}
          s_lshl_b32 {sC4}, {sC4}, 12
          s_lshl_b32 s3, {sP}, 11
          s_add_u32 {sC4}, {sC4}, s3
          v_add_u32 v{cUZ}, {sU}, v{vL16}
          s_cmp_eq_u32 {sP}, 0
          s_cselect_b32 s3, {sK}, {CV_DUMMY}
          v_mov_b32 v{cHW}, s3
          v_lshrrev_b32 v{Z+1}, 1, v0
          v_mul_u32_u24 v{Z+1}, {CV_KS}, v{Z+1}
          v_and_b32 v{Z+2}, 1, v0
          v_lshl_add_u32 v{Z+1}, v{Z+2}, 4, v{Z+1}
          v_add_u32 v{cZA}, v{cHW}, v{Z+1}
          s_lshl_b32 s3, {sP}, 10
          s_add_u32 s3, s3, {sK}
          v_add_u32 v{cKW}, s3, v{vL16}
          v_and_b32 v{Z}, 15, v0
          v_lshrrev_b32 v{Z+1}, 4, v0
          v_add_u32 v{Z+2}, 1, v{Z}
          v_and_b32 v{Z+3}, 3, v{Z+2}
          v_mul_u32_u24 v{cA}, {CV_KS}, v{Z+3}
          v_and_b32 v{Z+2}, 28, v{Z+2}
          v_lshlrev_b32 v{Z+3}, 3, v{Z+1}
          v_sub_u32 v{Z+2}, v{Z+2}, v{Z+3}
          v_add_u32 v{Z+2}, 24, v{Z+2}
          v_lshl_add_u32 v{cA}, v{Z+2}, 1, v{cA}
          s_lshl_b32 s3, {sP}, 6
          s_add_u32 {sT}, s3, {sK}
          v_add_u32 v{cA}, {sT}, v{cA}
          v_lshl_add_u32 v{cU}, v{Z}, 1, v{Z+1}
          v_lshlrev_b32 v{cU}, 4, v{cU}
          s_sub_u32 {sT}, {sU}, s3
          s_add_u32 {sT}, {sT}, {30*16 - 384}
          v_add_u32 v{cU}, {sT}, v{cU}
          v_lshrrev_b32 v{Z+2}, 1, v{Z+1}
          v_lshl_add_u32 v{Z+2}, v{Z}, 1, v{Z+2}
          v_lshlrev_b32 v{cDt}, 4, v{Z+2}
          v_and_b32 v{Z+2}, 1, v{Z+1}
          v_lshlrev_b32 v{Z+2}, 3, v{Z+2}
          v_sub_u32 v{cDt}, v{cDt}, v{Z+2}
          s_lshl_b32 s3, {sP}, 11
          s_add_u32 {sT}, s3, {sU}
          s_add_u32 {sT}, {sT}, {512 + 8}
          v_add_u32 v{cDt}, {sT}, v{cDt}
          s_lshl_b32 s3, {sW}, 12
          s_add_u32 {sT}, s3, {CV_RL}
          v_add_u32 v{cRW}, {sT}, v{vL16}
          s_xor_b32 {sT}, s3, 4096
          s_add_u32 {sT}, {sT}, {CV_RL}
          v_add_u32 v{cRR}, {sT}, v{vL16}
          v_bfe_u32 v{Z}, v0, 4, 1
          v_bfe_u32 v{Z+1}, v0, 2, 2
          v_lshl_add_u32 v{Z}, v{Z}, 2, v{Z+1}
          v_lshlrev_b32 v{Z}, 7, v{Z}
          v_lshrrev_b32 v{Z+1}, 5, v0
          v_and_b32 v{Z+2}, 3, v0
          v_lshl_add_u32 v{Z+1}, v{Z+1}, 2, v{Z+2}
          v_lshl_add_u32 v{Z}, v{Z+1}, 4, v{Z}
          s_add_u32 s3, {sC4}, {WS_Y}
          v_add_u32 v{cYS}, s3, v{Z}''')

def setup_late(opts):
    a = Asm(); a.opts = opts
    T = 10
    a(f'''s_lshl_b32 {sSB}, {sXCD}, 2
          s_lshr_b32 {sD}, {sJ}, 3
          s_add_u32 {sSB}, {sSB}, {sD}
          s_add_u32 {sDB}, {sJ}, {opts.get('dbo', 0)}
          s_and_b32 {sDB}, {sDB}, 7
          s_mul_i32 {sL1}, {sW}, {448*1024}
          s_lshl_b32 {sD}, {sDB}, 7
          s_add_u32 {sL1}, {sL1}, {sD}
          v_lshrrev_b32 v{T}, 3, v0
          v_lshlrev_b32 v{T}, 10, v{T}
          v_bfe_u32 v{T+1}, v0, 4, 1
          v_lshlrev_b32 v{T+1}, 2, v{T+1}
          v_and_b32 v{T+2}, 7, v0
          v_xor_b32 v{T+1}, v{T+1}, v{T+2}
          v_lshl_add_u32 v{T}, v{T+1}, 4, v{T}
          v_add_u32 v{gWD}, {sL1}, v{T}
          v_add_u32 v{gWD1}, {8192-1024}, v{gWD}
          s_lshl_b32 {sD}, {sSB}, 1
          s_add_u32 {sL1}, {sD}, {sP}
          s_xor_b32 {sL2}, {sL1}, 1
          s_mul_i32 {sL1}, {sL1}, {112*1024}
          s_mul_i32 {sL2}, {sL2}, {112*1024}
          s_mul_i32 {sD}, {sW}, {28*1024}
          s_add_u32 {sD}, {sD}, {WS_H}
          s_add_u32 {sL1}, {sL1}, {sD}
          s_add_u32 {sL2}, {sL2}, {sD}
          v_add_u32 v{gH0}, {sL1}, v{vL16}
          v_add_u32 v{gH1}, {sL2}, v{vL16}
          s_lshl_b32 {sME}, {sW}, 11
          v_lshrrev_b32 v{T}, 5, v0
          v_bfe_u32 v{T+1}, v0, 2, 2
          v_lshl_add_u32 v{T}, v{T}, 2, v{T+1}
          v_lshlrev_b32 v{T}, 7, v{T}
          v_bfe_u32 v{T+1}, v0, 3, 1
          s_lshr_b32 {sD}, {sW}, 1
          v_xor_b32 v{T+1}, {sD}, v{T+1}
          v_lshl_add_u32 v{T}, v{T+1}, 6, v{T}
          v_bfe_u32 v{T+1}, v0, 4, 1
          v_lshl_add_u32 v{T}, v{T+1}, 5, v{T}
          v_and_b32 v{T+1}, 3, v0
          v_lshl_add_u32 v{T}, v{T+1}, 3, v{T}
          v_add_u32 v{gAe0}, {sME}, v{T}
          v_xor_b32 v{gAe1}, 64, v{gAe0}
          v_add_u32 v{gAl0}, {WD_HI}, v{gAe0}
          v_add_u32 v{gAl1}, {WD_HI}, v{gAe1}''')
    r2 = a.opts.get('rot2', 1)
    if r2:
        a(f'''s_lshr_b32 {sL1}, {sJ}, 3
              s_add_u32 {sL2}, {sDB}, {sXCD if r2 == 1 else 0}
              s_cmp_ge_u32 {sL2}, 7
              s_cselect_b32 {sD}, 7, 0
              s_sub_u32 {sL2}, {sL2}, {sD}
              s_cmp_ge_u32 {sL2}, 7
              s_cselect_b32 {sD}, 7, 0
              s_sub_u32 {sL2}, {sL2}, {sD}
              s_lshl_b32 {sL2}, {sL2}, 12''')
    else:
        a(f's_mov_b32 {sL1}, 0\ns_mov_b32 {sL2}, 0')
    for i in range(4):
        a(f'''s_add_u32 s{TT+24+i}, {sL1}, {i}
              s_and_b32 s{TT+24+i}, s{TT+24+i}, 3
              s_lshl_b32 s{TT+24+i}, s{TT+24+i}, 10''')
    for b in range(7):
        for i in range(4): a(f's_add_u32 s{TT+4*b+i}, s{TT+24+i}, {sL2}')
        if b < 6:
            a(f'''s_add_u32 {sL2}, {sL2}, 4096
                  s_cmp_eq_u32 {sL2}, {7*4096}
                  s_cselect_b32 {sL2}, 0, {sL2}''')

    it = []
    for I in a.ins:
        if I.op.startswith('s_cselect'): it[-1] = Item([t for t, _ in it[-1].ins] + [I.text])
        else: it.append(Item([I.text]))
    return it

def g1_x(c, i, setm0):
    slot = c % 3
    grp = [f's_add_u32 m0, {sMX}, {slot*G1_XS}'] if setm0 else []
    return Item(grp + [(f'buffer_load_dwordx4 v{XD+i}, {SRD_Q}, {sX[slot]} offen offset:{1024*i} lds', f'g1dma{c}')])
def g1_w(c, u, setm0, setw):
    slot = c % 3
    grp = [f's_mul_i32 {sWC}, {sX[slot]}, 1792'] if setw else []
    if setm0: grp.append(f's_add_u32 m0, {sMW}, {slot*G1_WS + 4096*(u >> 1)}')
    return Item(grp + [(f'buffer_load_dwordx4 v{WD+u}, {SRD_W}, {sWC} offen offset:{2048*(u&1)} lds', f'g1dma{c}')])
def g1_lead(a, c):
    it = []
    if c >= 3: it.append(Item([f's_add_u32 {sX[c%3]}, {sX[(c-1)%3]}, 128', f's_and_b32 {sX[c%3]}, {sX[c%3]}, 1023']))
    return it + [g1_x(c, 0, True), g1_x(c, 1, False), g1_w(c, 0, True, True)]
def g1_follow(a, c, start=0):
    pieces = [('x', 2), ('x', 3)] + [('w', u) for u in range(1, 2*a.NT)]
    it = []; prev = None
    for k, (kind, i) in enumerate(pieces):
        if k < start: continue
        if kind == 'x': it.append(g1_x(c, i, prev != 'x'))
        else: it.append(g1_w(c, i, prev != 'w' or i % 2 == 0, prev != 'w'))
        prev = kind
    return it

def g1_rdB(k, be, dst):
    c, ks = k >> 2, k & 3; slot = c % 3
    return f'ds_read_b128 a[{dst}:{dst+3}], v{XR+ks} offset:{slot*G1_XS + 4096*be}'
def g1_rdA(a, k, tt, dst):
    c, ks = k >> 2, k & 3; slot = c % 3
    rs = 256 if a.NT == 4 else 128
    return [f'ds_read_b64_tr_b16 a[{dst+2*m}:{dst+2*m+1}], v{WR + tt + (4 if slot == 2 else 0)} offset:{(16*ks + 4*m)*rs + (G1_WS if slot == 1 else 0)}'
            for m in range(2)]
def g1_reads(a, k):
    buf = (k & 1)*24
    r = [(g1_rdB(k, be, buf + 16 + 4*be), f'r{k}_b') for be in range(2)]
    for tt in range(a.NT): r += [(x, f'r{k}_{tt}') for x in g1_rdA(a, k, tt, buf + 4*tt)]
    return r
def mfma32(acc, A, B, first):
    return f'v_mfma_f32_32x32x16_bf16 v[{acc}:{acc+15}], {A}, {B}, ' + ('0' if first else f'v[{acc}:{acc+15}]')

def flag_store(off_sgpr, lbl=None):
    return ['s_mov_b64 exec, 1', (f'buffer_store_dwordx2 v[{vN}:{vN+1}], off, {SRD_WS}, {off_sgpr} sc1', 'flag'), 's_mov_b64 exec, -1']

def spin(a, cond_ins, reload_ins, name):
    Ld = a.newlabel('L_ok_' + name); Ll = a.newlabel('L_spin_' + name)
    for t in cond_ins: a(t)
    a(f's_cbranch_vccz {Ld}\ns_mov_b32 {sSPIN}, 0')
    a.label(Ll)
    a(f"s_sleep {a.opts.get('slp', 8)}")
    for t in reload_ins: a(t)
    a('s_waitcnt vmcnt(0)')
    for t in cond_ins: a(t)
    a(f'''s_cbranch_vccz {Ld}
          s_add_u32 {sSPIN}, {sSPIN}, 1
          s_cmp_lt_u32 {sSPIN}, 0x10000
          s_cbranch_scc1 {Ll}''')
    a.label(Ld)

def nonce_load(): return Item([(f'buffer_load_dwordx2 v[{vN}:{vN+1}], off, {SRD_DBG}, 0 sc1', 'nonce')])
def nonce_check():
    def f(a):
        spin(a, [f'v_cmp_eq_u64 vcc, 0, v[{vN}:{vN+1}]'], [f'buffer_load_dwordx2 v[{vN}:{vN+1}], off, {SRD_DBG}, 0 sc1'], 'nonce')
    return Item([('@waitvm', 'nonce'), ('@call', f)], cost=3)
def poll_issue(addr_ins, soff):
    return Item(addr_ins + [(f'buffer_load_dwordx2 v[{vF}:{vF+1}], v{vFA}, {SRD_WS}, {soff} offen sc1', 'poll')])
def poll_check(soff, name):
    def f(a):
        spin(a, [f'v_cmp_ne_u64 vcc, v[{vN}:{vN+1}], v[{vF}:{vF+1}]'],
             [f'buffer_load_dwordx2 v[{vF}:{vF+1}], v{vFA}, {SRD_WS}, {soff} offen sc1'], name)
    return Item([('@waitvm', 'poll'), ('@call', f)], cost=3)

def chunks(lst, n):
    return [Item(lst[i:i+n]) for i in range(0, len(lst), n)]

def p0_dma_items():
    it = [Item([f's_lshl_b32 {sA}, {sW}, 13', f's_lshl_b32 {sB}, {sW}, 10'])]
    for jj in range(2):
        for srd_, base in ((SRD_K, P0_K), (SRD_V, P0_V)):
            it.append(Item([f's_add_u32 m0, {sB}, {base + jj*4096}', (f'buffer_load_dwordx4 v{pKO}, {srd_}, {sA} offen lds', 'p0dma')]))
        if jj < 1: it.append(Item([f's_add_u32 {sA}, {sA}, 32768']))
    it.append(Item([(f'buffer_load_dwordx2 v[{P_SH}:{P_SH+1}], v{pSHA}, {SRD_SH}, 0 offen', 'p0dma')]))
    it.append(Item(['s_mov_b64 exec, 0xffff'] + [(f'buffer_load_ushort v{P_H+i}, v{pHA}, {SRD_K}, 0 offen offset:{1024*i}', 'p0dma') for i in range(3)] + ['s_mov_b64 exec, -1'], cost=3))
    return it
def p0_compute():
    P, Vv, KF, W, sh = P_P, P_V, P_KF, P_W, P_SH
    l = []
    for i in range(5): l.append(f'ds_read_b64_tr_b16 v[{P+2*i}:{P+2*i+1}], v{pTR} offset:{512*i}')
    for i in range(4): l.append(f'ds_read_b64_tr_b16 v[{Vv+2*i}:{Vv+2*i+1}], v{pTR} offset:{P0_V - P0_K + 512 + 512*i}')
    rd = [Item([x]) for x in l]
    rd[-1].gap = 3
    l = [f'v_lshlrev_b32 v{W}, 16, v{sh}', f'v_and_b32 v{W+1}, 0xffff0000, v{sh}', f'v_lshlrev_b32 v{W+2}, 16, v{sh+1}', f'v_and_b32 v{W+3}, 0xffff0000, v{sh+1}']
    kf = lambda j: KF + j - 1
    for j in range(1, 20):
        l.append(f'v_and_b32 v{kf(j)}, 0xffff0000, v{P + j//2}' if j & 1 else f'v_lshlrev_b32 v{kf(j)}, 16, v{P + j//2}')
    va = [Item([x]) for x in l]
    va.append(Item(['s_mov_b64 exec, 0xffff'] + [f'v_lshlrev_b32 v{kf(1+i)}, 16, v{P_H+i}' for i in range(3)] + ['s_mov_b64 exec, -1'], cost=3))
    l = []
    for s_ in range(16):
        d = kf(s_ + 1)
        l.append(f'v_mul_f32 v{d}, v{d}, v{W+3}')
        for step in range(1, 4): l.append(f'v_fmac_f32 v{d}, v{kf(s_ + 1 + step)}, v{W+3-step}')
    O = P
    for i in range(8):
        t = sh + (i & 1)
        l += [f'v_lshlrev_b32 v{t}, 16, v{Vv+i}', f'v_and_b32 v{Vv+i}, 0xffff0000, v{Vv+i}',
              f'v_mul_f32 v{kf(2*i+1)}, v{kf(2*i+1)}, v{t}', f'v_mul_f32 v{kf(2*i+2)}, v{kf(2*i+2)}, v{Vv+i}']
    for j in range(2):
        for d in range(4): l.append(f'v_cvt_pk_bf16_f32 v{O+4*j+d}, v{kf(8*j+7-2*d+1)}, v{kf(8*j+6-2*d+1)}')
    va += [Item([x]) for x in l]
    X = Vv
    tr = [Item([f'ds_write_b128 v{pLW}, v[{O}:{O+3}]'], gap=3), Item([f'ds_write_b128 v{pLW}, v[{O+4}:{O+7}] offset:16'], gap=2),
          Item([f'ds_read_b128 v[{X}:{X+3}], v{pLR}']), Item([f'ds_read_b128 v[{X+4}:{X+7}], v{pLR} offset:{8*144}'], gap=4)]
    st = [Item([f's_mov_b32 {sWT}, 32768', (f'buffer_store_dwordx4 v[{X}:{X+3}], v{pST}, {SRD_WS}, 0 offen sc1', 'kvst')], gap=2),
          Item([(f'buffer_store_dwordx4 v[{X+4}:{X+7}], v{pST}, {SRD_WS}, {sWT} offen sc1', 'kvst')])]
    return rd + va, tr, st
def f1_publish():
    return Item([('@waitvm', 'kvst'), f's_add_u32 {sA}, {sXCD}, {sJ if OPT.get("cbrot", 1) else 0}', f's_and_b32 {sA}, {sA}, 7', f's_lshl_b32 {sA}, {sA}, 2', f's_add_u32 {sA}, {sA}, {sW}', f's_lshl_b32 {sA}, {sA}, 5',
                 f's_add_u32 {sA}, {sA}, {sJ}', f's_lshl_b32 {sA}, {sA}, {FS}', f's_add_u32 {sA}, {sA}, {WS_F1}'] + flag_store(sA))

def pair_index(d, t):
    return [f's_lshl_b32 {d}, {sRB}, 1', f's_lshr_b32 {t}, {sW}, 1', f's_add_u32 {d}, {d}, {t}', f's_lshl_b32 {d}, {d}, 4', f's_add_u32 {d}, {d}, {sFS}',
            f's_lshl_b32 {d}, {d}, 1', f's_add_u32 {d}, {d}, {sP}']
def g_load_items():
    q0, q1, gw = G_T, G_T+4, G_T+8
    return [Item(pair_index(sA, sB) + [f's_lshl_b32 {sA}, {sA}, 11', f's_add_u32 {sA}, {sA}, {BIAS}']),
            Item([(f'buffer_load_dwordx4 v[{gw}:{gw+3}], v{vL16}, {SRD_GW}, 0 offen', 'gld')]),
            Item([(f'buffer_load_dwordx4 v[{q0}:{q0+3}], v{vL16}, {SRD_Q}, {sA} offen', 'gld')]),
            Item([(f'buffer_load_dwordx4 v[{q1}:{q1+3}], v{vL16}, {SRD_Q}, {sA} offen offset:1024', 'gld')])]
def g_compute_items():
    q0, q1, gw, z0, z1 = G_T, G_T+4, G_T+8, G_T+12, G_T+13
    l = []
    it = []
    t0, t1, t2 = G_T+14, G_T+15, vZ
    for i in range(4):
        l = [f'v_lshlrev_b32 v{t0}, 16, v{gw+i}', f'v_and_b32 v{gw+i}, 0xffff0000, v{gw+i}',
             f'v_lshlrev_b32 v{t1}, 16, v{q0+i}', f'v_lshlrev_b32 v{t2}, 16, v{q1+i}',
             f'v_and_b32 v{q0+i}, 0xffff0000, v{q0+i}', f'v_and_b32 v{q1+i}, 0xffff0000, v{q1+i}']
        if i == 0: l += [f'v_mul_f32 v{z0}, v{t1}, v{t0}', f'v_mul_f32 v{z1}, v{t2}, v{t0}']
        else: l += [f'v_fmac_f32 v{z0}, v{t1}, v{t0}', f'v_fmac_f32 v{z1}, v{t2}, v{t0}']
        l += [f'v_fmac_f32 v{z0}, v{q0+i}, v{gw+i}', f'v_fmac_f32 v{z1}, v{q1+i}, v{gw+i}']
        it += [Item([x]) for x in l]
    it[-1].gap = 1
    for r in (8, 4, 2, 1):
        it.append(Item([f'v_add_f32_dpp v{z0}, v{z0}, v{z0} row_ror:{r} row_mask:0xf bank_mask:0xf',
                        f'v_add_f32_dpp v{z1}, v{z1}, v{z1} row_ror:{r} row_mask:0xf bank_mask:0xf'], gap=1))
    seq = [f'v_permlane16_swap_b32 v{z0}, v{z1}', f'v_add_f32 v{z0}, v{z0}, v{z1}', f'v_mov_b32 v{z1}, v{z0}',
           f'v_permlane32_swap_b32 v{z0}, v{z1}', f'v_add_f32 v{z0}, v{z0}, v{z1}', f'v_cvt_pk_bf16_f32 v{z0}, v{z0}, v{z0}',
           f'v_and_b32 v{z0}, 0xffff0000, v{z0}', f'v_mul_f32 v{z0}, 0xbfb8aa3b, v{z0}', f'v_exp_f32 v{z0}, v{z0}',
           f'v_add_f32 v{z0}, 1.0, v{z0}', f'v_rcp_f32 v{z0}, v{z0}', f'v_cvt_pk_bf16_f32 v{z0}, v{z0}, v{z0}',
           f'v_and_b32 v{q0}, 0xffff0000, v{z0}', f'v_sub_f32 v{z0}, 1.0, v{q0}', f'v_cvt_pk_bf16_f32 v{z0}, v{z0}, v{z0}',
           f'v_and_b32 v{q0+1}, 0xffff0000, v{z0}', f'v_lshrrev_b32 v{z1}, 1, v0']
    it += [Item([x], gap=1 if ('swap' in y or 'exp' in x or 'rcp' in x) else 0) for x, y in zip(seq, seq[1:] + [''])]
    it.append(Item(pair_index(sWT, sT) + [f's_lshl_b32 {sWT}, {sWT}, 4', f's_add_u32 {sWT}, {sWT}, {WS_G}', 's_mov_b64 exec, 0x10001',
                    (f'buffer_store_dwordx2 v[{q0}:{q0+1}], v{z1}, {SRD_WS}, {sWT} offen sc1', 'gst'), 's_mov_b64 exec, -1']))
    return it

K_AG = 48
def k_fetch_items():
    return [Item([f'v_accvgpr_read_b32 v{K_A+i}, a{K_AG+i}']) for i in range(12)]
def k_load_items():
    it = [Item([f's_lshl_b32 {sA}, {sP}, 10', f's_sub_u32 {sA}, {sC4}, {sA}'])]
    for r in range(2):
        A = K_A + 6*r
        A = K_AG + 6*r
        it.append(Item([(f'buffer_load_dwordx4 a[{A}:{A+3}], v{vL16}, {SRD_SK}, {sA} offen offset:{2048*r}', 'kld')]))
        it.append(Item([(f'buffer_load_dwordx2 a[{A+4}:{A+5}], v{vL16}, {SRD_SK}, {sA} offen offset:{2048*r+16}', 'kld')]))
    return it
def k_copy(r, c, C, gap):
    A = K_A + 6*r; off = 32 + 2048*r + c*CV_KS
    if c == 0: return [Item([f'ds_write_b128 v{cKW}, v[{A}:{A+3}] offset:{off}'], gap=gap)]
    if c == 2: l = [f'v_mov_b32 v{C+i}, v{A+i+1}' for i in range(4)]
    else: l = [f'v_alignbit_b32 v{C+i}, v{A+i+1+(c>>1)}, v{A+i+(c>>1)}, 16' for i in range(4)]
    return [Item([x]) for x in l] + [Item([f'ds_write_b128 v{cKW}, v[{C}:{C+3}] offset:{off}'], gap=gap)]
def k_copies(a):
    Z = K_Z; A = K_A
    emit(a, k_fetch_items())
    for i in range(4): a(f'v_mov_b32 v{Z+i}, 0')
    a(f's_mov_b64 exec, 0xff\nds_write_b128 v{cZA}, v[{Z}:{Z+3}]\ns_mov_b64 exec, -1')
    n = 0
    for r in range(2):
        for c in (0, 2, 3, 1):
            for it in k_copy(r, c, K_C + 4*(n & 1), 0): emit(a, [it])
            if r == 1 and c == 0 and a.hst: emit(a, [a.hst.pop(0)])
            if c == 1 and r == 0:
                C1 = K_C + 4*(n & 1)
                a(f"""v_lshlrev_b32 v{Z}, 16, v{A}
                      s_mov_b64 exec, 1
                      ds_write_b32 v{cHW}, v{Z} offset:{CV_KS + 28}
                      ds_write_b32 v{cHW}, v{A} offset:{2*CV_KS + 28}
                      ds_write_b32 v{cHW}, v{Z} offset:{3*CV_KS + 24}
                      ds_write_b32 v{cHW}, v{C1} offset:{3*CV_KS + 28}
                      s_mov_b64 exec, -1""")
            if c: n += 1
def u_zero_items():
    Z = K_Z
    return [Item([f'v_mov_b32 v{Z+i}, 0']) for i in range(4)] + [Item(['s_mov_b32 exec_hi, 0', f'ds_write_b128 v{cUZ}, v[{Z}:{Z+3}]', 's_mov_b64 exec, -1'])]
def f1_poll_items():
    soff = sB
    return (poll_issue([f's_lshl_b32 {sB}, {sXCD}, 2', f's_lshr_b32 {sA}, {sJ}, 3', f's_add_u32 {sB}, {sB}, {sA}', f's_lshl_b32 {sB}, {sB}, {5+FS}',
                        f's_add_u32 {sB}, {sB}, {WS_F1}', f'v_and_b32 v{vFA}, 31, v0', f'v_lshlrev_b32 v{vFA}, {FS}, v{vFA}'], soff),
            poll_check(soff, 'f1'))
def u_dma_items():
    return [Item([f's_add_u32 {sA}, {sC4}, {WS_KVT}', f's_lshl_b32 {sB}, {sP}, 11', f's_add_u32 {sB}, {sB}, {sU}', f's_add_u32 m0, {sB}, 512',
                  (f'buffer_load_dwordx4 v{vL16}, {SRD_WS}, {sA} offen sc1 lds', 'udma'),
                  (f'buffer_load_dwordx4 v{vL16}, {SRD_WS}, {sA} offen offset:1024 sc1 lds', 'udma')])]

NW = len(WD_BLK)
def wd_dma(i):
    t = W_ORD[i]; blk = WD_BLK[i % NW]
    return Item([f's_lshl_b32 {sWT}, s{TT+t}, 4', f's_add_u32 m0, {sME}, {blk}',
                 (f'buffer_load_dwordx4 v{gWD}, {SRD_WD}, {sWT} offen lds', f'wd{t}'),
                 (f'buffer_load_dwordx4 v{gWD1}, {SRD_WD}, {sWT} offen offset:1024 lds', f'wd{t}')])
def wd_reads(i):
    t = W_ORD[i]; blk = WD_BLK[i % NW]
    vb, off = (gAe0, blk) if blk < WD_HI else (gAl0, blk - WD_HI)
    r = [f'ds_read_b64_tr_b16 a[{8*t+4*al+2*m}:{8*t+4*al+2*m+1}], v{vb+al} offset:{off + 1024*m}' for al in range(2) for m in range(2)]
    return [Item([('@waitvm', f'wd{t}'), (r[0], f'wr{t}')])] + [Item([(x, f'wr{t}')]) for x in r[1:]]
def h_load(p):
    t = H_ORD[p]; ty, b = hslot(p % NH)
    return [Item([(f'buffer_load_dwordx4 {ty}[{b}:{b+3}], v{gH0}, {SRD_WS}, s{TT+t} offen sc1', f'h{p}')]),
            Item([(f'buffer_load_dwordx4 {ty}[{b+4}:{b+7}], v{gH1}, {SRD_WS}, s{TT+t} offen sc1', f'h{p}')])]

def g1_main(a):
    o = a.opts; NT = a.NT; NB = 2*NT; PER = 4*NB
    sc = Sched(a); a.sc = sc
    qd = sc.queue('vm', [], force=True)
    qg = sc.queue('gate', [])
    qp = sc.queue('misc', [])
    def spread(items, b0, span):
        nv = sum(1 for it in items if any(t.startswith('buffer_') for t, _ in it.ins))
        i = 0
        for it in items:
            it.nb = b0 + int(i*span)//max(nv, 1)
            if any(t.startswith('buffer_') for t, _ in it.ins): i += 1
        return items
    def at(items, nb):
        for it in items: it.nb = max(it.nb, nb)
        return items
    fr = lambda key, dflt: o.get(key, dflt)*PER/32.0
    stamp(a, 0, 'pro')
    a.wait_vm('g1dma0')
    a('s_barrier')
    stamp_lazy(a, 'c0')
    for r in g1_reads(a, 0): a(r[0], r[1])
    lf = o.get('lf', 1) and NT == 4
    qd['items'] += spread(a.pend1, 0, fr('sp0', 9)) + spread(a.pend2, int(fr('sp0', 9)), fr('sp1', 15))
    p0va, p0tr, p0st = p0_compute()
    carry = []
    f1i, f1c = f1_poll_items()
    acc = lambda tt, be: G1ACC + 16*(2*tt + be)
    TB, TA = 64, (0, 96)
    for k in range(28):
        c, ks = k >> 2, k & 3
        if k < 27: reads = g1_reads(a, k+1)
        else: reads = [g1_rdB(28+i, be, TB + 16*be + 4*i) for be in range(2) for i in range(4)] + [x for i in range(4) for x in g1_rdA(a, 28+i, 0, TA[0] + 4*i)]
        own = [[] for _ in range(NB)]
        first = 0
        if ks == 3:
            def bar(a, c=c):
                stamp_lazy(a, f'b{c}in', 's[0:1]')
                a.wait_vm(f'g1dma{c+1}')
                a('s_waitcnt lgkmcnt(0)')
                flush_pending(a)
                a('s_barrier')
                stamp_lazy(a, f'b{c}out')
            own[0] = [Item([('@call', bar)], cost=5)]; first = 1
        ng = NB - first - (1 if NT == 4 else 0)
        for i, r in enumerate(reads): own[first + (i*ng)//len(reads)].append(r)
        for t in range(NB):
            tt, be = t >> 1, t & 1
            if ks == 3 and t == 0:
                tagneed = f'g1dma{c+1}'
                while any(g == tagneed for it in qd['items'] for _, g in it.ins): sc.emit(qd['items'].pop(0))
            buf = (k & 1)*24
            pre = {0: f'r{k}_{NT//2-1}', NT: f'r{k}_{NT-1}'}.get(t)
            sc.step(mfma32(acc(tt, be), f'a[{buf+4*tt}:{buf+4*tt+3}]', f'a[{buf+16+4*be}:{buf+19+4*be}]', k == 0), own[t], cap=o.get('cap1', 5) if NT == 4 else o.get('cap1l', 9),
                    pre=pre, post=1 if t in (NT-1, NB-1) else 0)
            if ks == 3 and t == 0:
                b = sc.beat
                ex = []; pre = []
                if c == 0 and not a.earlyp0: pre = p0_dma_items() + [nonce_load()]
                if c == 0 and NT == 2 and o.get('skpf', 0): ex = sk_prefetch_items()
                if c == 1 and a.earlyp0: ex = [nonce_check(), f1_publish()]
                if c == 1 and not a.earlyp0:
                    def p0bar(a):
                        a.wait_vm('p0dma'); a('s_barrier')
                    qp['items'] += at([Item([('@call', p0bar)], cost=2)] + p0va, b + int(fr('p0b', 14)))
                if c == 2:
                    while any(t.startswith('ds_read') for it in qp['items'] for t, _ in it.ins): raise Exception('P0 staging reads must precede barrier 2')
                    if not a.earlyp0: qp['items'] += p0tr
                    if o.get('wdpf', 0) == 1 and NT == 2:
                        ex = [Item([f's_lshl_b32 {sA}, {sXCD}, 3', f's_and_b32 {sB}, {sJ}, 7', f's_add_u32 {sA}, {sA}, {sB}', f's_lshl_b32 {sA}, {sA}, 2',
                                    f's_add_u32 {sA}, {sA}, {sW}', f's_mul_i32 {sA}, {sA}, 7168'])]
                        for i in range(7):
                            if i == 4: ex.append(Item([f's_add_u32 {sA}, {sA}, 4096']))
                            ex.append(Item([(f'buffer_load_dwordx4 v[{vPF}:{vPF+3}], v{vL16}, {SRD_WD}, {sA} offen offset:{1024*(i%4)}', 'pf')]))
                if c == 3:
                    def drainp(a):
                        if qp['items']: print('note: P0 items left before the kv stores:', len(qp['items']))
                        sc.drain(qp)
                    ex = ([Item([('@call', drainp)], cost=0)] + p0st if not a.earlyp0 else []) + (k_load_items() if o.get('kat', 5) == 3 else [])
                    if o.get('wd3', 3) == 3: ex = wd3_prefetch_items() + ex
                if c == 4:
                    ex = [nonce_check(), f1_publish()] if not a.earlyp0 else []
                    if o.get('wd3', 3) == 4: ex = wd3_prefetch_items() + ex
                    if o.get('wdpf', 0) == 2:
                        ex = [Item([f's_lshl_b32 {sA}, s2, 2', f's_add_u32 {sA}, {sA}, {sW}', f's_mul_i32 {sA}, {sA}, 1792']),
                              Item([(f'buffer_load_dwordx4 v[{vPF}:{vPF+3}], v{vL16}, {SRD_WD}, {sA} offen', 'pf')]),
                              Item([(f'buffer_load_dwordx4 v[{vPF}:{vPF+3}], v{vL16}, {SRD_WD}, {sA} offen offset:768', 'pf')])] + ex
                    qp['items'] += at(u_zero_items(), b)
                if lf:
                    nE = o.get('nE', 2)
                    spF = fr('spF', 15) if carry else 0
                    items = spread(carry, b, spF)
                    nxt = pre + (g1_lead(a, c + 3) if c + 3 < 8 else []) + ex
                    items += spread(nxt, b + int(spF), fr('spL', 7) if not pre else fr('spP', 18))
                    if c + 3 < 8:
                        items += spread(g1_follow(a, c + 3)[:nE], b + int(fr('bE', 25)), 4)
                        carry = g1_follow(a, c + 3, nE)
                    else: carry = []
                    qd['items'] += items
                elif c + 3 < 8: qd['items'] += spread(g1_lead(a, c + 3) + g1_follow(a, c + 3) + pre + ex, b, fr('sp', 26))
                else: qd['items'] += at(ex, b)
                if c == 5:
                    sc.drain(qp)
                    f1i.nb = b + int(fr('f1d', 33))
                    late1 = ([f1i] if NT == 4 else []) + at(g_load_items() + (k_load_items() if o.get('kat', 5) == 5 else []), b + int(fr('gl', 14)))
                    if not o.get('nog'): qg['items'] += at([Item([('@waitvm', 'gld')])] + g_compute_items(), b + int(fr('gb', 34)))
                    n23 = min(o.get('wd23n', 4), WD_N23)
                    wd = [wd_dma(i) for i in range(n23)]
                    qd['items'] += sorted(spread(wd, b + int(fr('wd23', 21)), fr('wd23s', 8)) + late1, key=lambda it: it.nb)
                    a.wdnext = n23
                if c == 6:
                    n27 = o.get('wd27n', 3)
                    wd = [wd_dma(i) for i in range(a.wdnext, a.wdnext + n27)]
                    late2 = at([f1c] + u_dma_items(), b + int(fr('f1c', 20))) if NT == 4 else []
                    qd['items'] += sorted(spread(wd, b + int(fr('wd27', 1)), fr('wd27s', 8)) + late2, key=lambda it: it.nb)
                    a.wdnext += n27
    ND = min(o.get('hdef', 6), NB - 2)
    HREG = [160, 164, 168, 172, 208, 212]
    a.hst = []
    def epi(tt, be):
        A = acc(tt, be); n = 2*tt + be - (NB - ND)
        O = HREG[n] if n >= 0 else A + 8
        l = [f'v_max_f32 v{A+j}, 0, v{A+j}' for j in range(8)]
        l += [f'v_mul_f32 v{A+j}, v{A+j}, v{A+8+j}' for j in range(8)]
        l += [f'v_cvt_pk_bf16_f32 v{O+j}, v{A+2*j}, v{A+2*j+1}' for j in range(4)]
        st = (f'buffer_store_dwordx4 v[{O}:{O+3}], v{vL16}, {SRD_WS}, {(sHB, sX[0])[be]} offen offset:{1024*tt} sc1', 'hst')
        it = [Item([x]) for x in l]
        if n >= 0: it.append(Item([('@call', lambda a_, st=st: a_.hst.append(Item([st])))], cost=0))
        else: it.append(Item([st]))
        return it
    hp = o.get('hpace', 8)
    def tail_store(g):
        if a.hst and sc.beat >= a.hnb: sc.emit(a.hst.pop(0)); a.hnb = sc.beat + hp
    a.hnb = sc.beat + 4*(NB - ND + 1) + hp
    sc.emit(Item([f's_add_u32 {sX[0]}, {sHB}, {112*1024}']))
    qe = sc.queue('epi', [])
    for tt in range(NT):
        if tt in (0, NT//2): stamp(a, 0, f'tl{tt}')
        if tt == 2:
            if qg['items']: print('note: gate items left in the tail:', len(qg['items']))
            sc.drain(qg)
        ab = TA[tt & 1]; nb_ = TA[(tt + 1) & 1]
        rds = [x for i in range(4) for x in g1_rdA(a, 28+i, tt+1, nb_ + 4*i)] if tt < NT-1 else []
        for be in range(2):
            for i in range(4):
                own = rds[:1]; rds = rds[1:]
                sc.step(mfma32(acc(tt, be), f'a[{ab+4*i}:{ab+4*i+3}]', f'a[{TB+16*be+4*i}:{TB+16*be+4*i+3}]', False), own, cap=o.get('capt', 6))
                tail_store(0)
            qe['items'] += at(epi(tt, be), sc.beat + o.get('elag', 1))
    if qg['items']: print('note: gate items left at the end of G1:', len(qg['items']))
    sc.drain(qg); sc.drain(qd); sc.drain(qe)
    a.lpoll = (f1i, f1c) if NT == 2 else None
    if a.lpoll: sc.emit(f1i)
    stamp(a, 0, 'g1end')

def conv_main(a):
    o = a.opts
    sc = Sched(a); a.sc = sc
    a('s_waitcnt lgkmcnt(0)\ns_barrier')
    if a.hst: emit(a, [a.hst.pop(0)])
    k_copies(a)
    if a.lpoll: emit(a, [a.lpoll[1]] + u_dma_items())
    a.wait_vm('udma')
    a('s_waitcnt lgkmcnt(0)\ns_barrier')
    stamp_lazy(a, 'cvgo')
    def rdA(e):
        b = CV_AF + 4*(e % 4)
        return [f'ds_read_b64 v[{b}:{b+1}], v{cA} offset:{128*e}', f'ds_read_b64 v[{b+2}:{b+3}], v{cA} offset:{128*e+8}']
    def rdU(mu):
        b = CV_UF + 4*(mu + 3)
        return f'ds_read_b128 v[{b}:{b+3}], v{cU} offset:{128*(mu+3)}'
    LA = 3
    for e in range(LA):
        if e == 1:
            for n in range(8): a(rdU(4*n))
        for r in rdA(e): a(r)
    qf = sc.queue('flag', [], force=True)
    qw = sc.queue('wd', [], pace=o.get('pw', 0))
    for i, it in enumerate(a.hst): it.nb = o.get('hc0', 2) + o.get('hcp', 14)*i
    qf['items'] += a.hst
    nlast = a.hst[-1].nb if a.hst else 0
    qf['items'].append(Item([('@waitvm', 'hst'), ('@waitvm', 'gst')] + pair_index(sA, sB) + [f's_lshl_b32 {sA}, {sA}, {FS}', f's_add_u32 {sA}, {sA}, {WS_F2}'] + flag_store(sA),
                            nb=nlast + o.get('f2b', 45)))
    seq = [wd_dma(i) for i in range(a.wdnext, NW)]
    for i, it in enumerate(seq): it.nb = nlast + 2 + o.get('wdp', 3)*i
    b0 = o.get('wdr0', 2)
    for i in range(28):
        rd = wd_reads(i)
        for it in rd: it.nb = b0 + (i*o.get('wdrp', 15))//4
        seq += rd
        if i >= 1 and i - 1 + NW < 28:
            d = wd_dma(i - 1 + NW); d.ins = [('@waitlg', f'wr{W_ORD[i-1]}')] + d.ins; d.nb = max(rd[0].nb, nlast + 2); seq.append(d)
    if o.get('nowd'): seq = []
    qw['items'] = seq
    a.qw = qw
    f2i = poll_issue([f's_lshl_b32 {sB}, {sSB}, {5+FS}', f's_lshl_b32 {sA}, {sW}, {3+FS}', f's_add_u32 {sB}, {sB}, {sA}', f's_add_u32 {sB}, {sB}, {WS_F2}',
                      f'v_and_b32 v{vFA}, 7, v0', f'v_lshlrev_b32 v{vFA}, {FS}, v{vFA}'], sB)
    f2i.nb = o.get('f2p', 100)
    qf['items'].append(f2i)
    a.hnext = o.get('hpre', 4)
    f2c = poll_check(sB, 'f2'); f2c.nb = o.get('f2c', 128)
    qf['items'].append(f2c)
    for t in range(a.hnext):
        for it in h_load(t):
            it.nb = f2c.nb; qf['items'].append(it)
    for e in range(32):
        if e in (4, 8, 16): stamp(a, 0, f'cv{e}')
        fill = []
        if e + LA < 32: fill += rdA(e + LA)
        if e < 3: fill = [rdU(4*n - (e+1)) for n in range(8)] + fill
        ns = list(range(e >> 2, 8))
        per = -(-len(fill) // len(ns))
        for n in ns:
            b = CV_AF + 4*(e % 4); u = CV_UF + 4*(4*n - e + 3); A = CV_ACC + 4*n
            own = fill[:per]; fill = fill[per:]
            sc.step(f'v_mfma_f32_16x16x32_bf16 v[{A}:{A+3}], v[{b}:{b+3}], v[{u}:{u+3}], ' + ('0' if e == 0 else f'v[{A}:{A+3}]'), own, cap=o.get('capc', 2))
    stamp(a, 0, 'cvend')
    sc.drain(qf)
    stamp(a, 0, 'f2ok')
    X, U2, E = 16, 32, 40
    A = CV_ACC
    for i in range(4): a(f'ds_read_b64 v[{U2+2*i}:{U2+2*i+1}], v{cDt} offset:{512*i}')
    L1 = a.newlabel('L_cvp1'); L2 = a.newlabel('L_cvp2')
    a(f's_cmp_lg_u32 {sP}, 0\ns_cbranch_scc1 {L1}')
    for i in range(4): a(f'ds_write_b128 v{cRW}, v[{A+16+4*i}:{A+19+4*i}] offset:{1024*i}')
    a(f's_branch {L2}')
    a.label(L1)
    for i in range(4): a(f'ds_write_b128 v{cRW}, v[{A+4*i}:{A+3+4*i}] offset:{1024*i}')
    for i in range(16): a(f'v_mov_b32 v{A+i}, v{A+16+i}')
    a.label(L2)
    a('s_waitcnt lgkmcnt(4)')
    for i in range(4):
        a(f'''v_and_b32 v{E+4*i}, 0xffff0000, v{U2+2*i+1}
              v_lshlrev_b32 v{E+4*i+1}, 16, v{U2+2*i+1}
              v_and_b32 v{E+4*i+2}, 0xffff0000, v{U2+2*i}
              v_lshlrev_b32 v{E+4*i+3}, 16, v{U2+2*i}''')
    a(f'v_lshlrev_b32 v{vD}, 16, v{vD}')
    for i in range(16): a(f'v_fmac_f32 v{A+i}, v{vD}, v{E+i}')
    a('s_waitcnt lgkmcnt(0)\ns_barrier')
    for i in range(4): a(f'ds_read_b128 v[{X+4*i}:{X+4*i+3}], v{cRR} offset:{1024*i}')
    for i in range(0, 16, 2): a(f'v_pk_add_f32 v[{A+i}:{A+i+1}], v[{A+i}:{A+i+1}], v[{X+i}:{X+i+1}]')
    for i in range(8): a(f'v_cvt_pk_bf16_f32 v{E+i}, v{A+2*i}, v{A+2*i+1}')
    for i in range(2):
        a(f'''v_permlane16_swap_b32 v{E+4*i}, v{E+4*i+2}
              v_permlane16_swap_b32 v{E+4*i+1}, v{E+4*i+3}''')
        a(f'buffer_store_dwordx4 v[{E+4*i}:{E+4*i+3}], v{cYS}, {SRD_WS}, 0 offen offset:{1024*i} sc1', tag='yst')
    stamp(a, 0, 'yst')

def g2_main(a):
    o = a.opts
    sc = Sched(a); a.sc = sc
    qw = sc.queue('wd', a.qw['items'])
    for it in qw['items']: it.nb = 0
    qh = sc.queue('h', [], pace=o.get('ph', 0))
    qx = sc.queue('x', [])
    T = 10
    QV, YV, AT = 224, 232, None
    x = []
    x.append(Item([('@waitvm', 'yst'), f's_lshl_b32 {sA}, {sXCD}, 1', f's_add_u32 {sA}, {sA}, {sP}', f's_lshl_b32 {sA}, {sA}, 5', f's_add_u32 {sA}, {sA}, {sJ}',
                   f's_lshl_b32 {sA}, {sA}, 1', f's_lshr_b32 {sB}, {sW}, 1', f's_add_u32 {sA}, {sA}, {sB}', f's_lshl_b32 {sA}, {sA}, {FS}',
                   f's_add_u32 {sA}, {sA}, {WS_F3}'] + flag_store(sA), nb=o.get('f3b', 28)))
    setup = [f's_xor_b32 {sU}, {sW}, 1', f's_lshl_b32 {sU}, {sU}, 12', f's_add_u32 {sU}, {sU}, {CV_RL}',
             f's_lshr_b32 {sK}, {sW}, 1',
             f'v_lshrrev_b32 v{T}, 2, v0', f'v_and_b32 v{T+1}, 3, v0',
             f'v_lshlrev_b32 v{gQ}, 10, v{T}', f'v_lshl_add_u32 v{gQ}, v{T+1}, 4, v{gQ}',
             f's_lshl_b32 {sA}, {sSB}, 1', f's_add_u32 {sA}, {sA}, {sP}', f's_lshl_b32 {sA}, {sA}, 15', f's_lshl_b32 {sB}, {sDB}, 7',
             f's_add_u32 {sA}, {sA}, {sB}', f's_lshl_b32 {sB}, {sK}, 6', f's_add_u32 {sA}, {sA}, {sB}',
             f'v_add_u32 v{gOS}, {sA}, v{gQ}', f'v_add_u32 v{gQ}, {BIAS}, v{gOS}',
             f'v_lshlrev_b32 v{gY}, 12, v{T}', f'v_lshrrev_b32 v{T+2}, 1, v{T+1}', f'v_lshl_add_u32 v{gY}, v{T+2}, 6, v{gY}',
             f'v_and_b32 v{T+2}, 1, v0', f'v_lshl_add_u32 v{gY}, v{T+2}, 4, v{gY}',
             f's_lshl_b32 {sA}, {sDB}, 1', f's_add_u32 {sA}, {sA}, {sK}', f's_lshl_b32 {sA}, {sA}, 17', f's_lshl_b32 {sB}, {sSB}, 7',
             f's_add_u32 {sA}, {sA}, {sB}', f's_lshl_b32 {sB}, {sP}, 5', f's_add_u32 {sA}, {sA}, {sB}', f's_add_u32 {sA}, {sA}, {WS_Y}',
             f'v_add_u32 v{gY}, {sA}, v{gY}',
             f'v_mul_u32_u24 v{gOR}, 80, v{T}', f'v_lshl_add_u32 v{gOR}, v{T+1}, 4, v{gOR}', f'v_add_u32 v{gOR}, {sU}, v{gOR}',
             f'v_and_b32 v{T}, 31, v0', f'v_lshrrev_b32 v{T+1}, 5, v0',
             f'v_lshlrev_b32 v{gQR}, 6, v{T}', f'v_lshl_add_u32 v{gQR}, v{T+1}, 3, v{gQR}', f'v_add_u32 v{gQR}, {sU}, v{gQR}',
             f'v_mul_u32_u24 v{gOW}, 80, v{T}', f'v_lshl_add_u32 v{gOW}, v{T+1}, 3, v{gOW}', f'v_add_u32 v{gOW}, {sU}, v{gOW}',
             f'v_lshlrev_b32 v{gGA}, 3, v{T}',
             f'v_bfe_u32 v{T+2}, v0, 2, 2', f'v_lshl_add_u32 v{T+1}, v{T+1}, 2, v{T+2}', f'v_lshlrev_b32 v{gYR}, 6, v{T+1}',
             f'v_bfe_u32 v{T+2}, v0, 1, 1', f'v_lshl_add_u32 v{gYR}, v{T+2}, 5, v{gYR}', f'v_bfe_u32 v{T+2}, v0, 4, 1',
             f'v_lshl_add_u32 v{gYR}, v{T+2}, 4, v{gYR}', f'v_and_b32 v{T+2}, 1, v0', f'v_lshl_add_u32 v{gYR}, v{T+2}, 3, v{gYR}',
             f'v_add_u32 v{gYR}, {sU}, v{gYR}', f'v_add_u32 v{gYR}, 2048, v{gYR}',
             f's_lshl_b32 {sA}, {sW}, 12', f's_add_u32 {sA}, {sA}, {G2_RL}', f'v_add_u32 v{gRR}, {sA}, v{vL16}']
    x += [Item([s]) for s in setup]
    x.append(Item([f's_mov_b32 m0, {sU}', (f'buffer_load_dwordx4 v{gQ}, {SRD_Q}, 0 offen lds', 'qd'), f'v_add_u32 v{T}, {16384-1024}, v{gQ}',
                   (f'buffer_load_dwordx4 v{T}, {SRD_Q}, 0 offen offset:1024 lds', 'qd')], nb=o.get('qb', 30)))
    f3i = poll_issue([f's_lshr_b32 {sA}, {sSB}, 4', f's_lshl_b32 {sB}, {sDB}, 1', f's_add_u32 {sB}, {sB}, {sA}', f's_lshl_b32 {sB}, {sB}, {6+FS}',
                      f's_lshl_b32 {sA}, {sK}, {5+FS}', f's_add_u32 {sB}, {sB}, {sA}', f's_add_u32 {sB}, {sB}, {WS_F3}',
                      f'v_and_b32 v{vFA}, 31, v0', f'v_lshlrev_b32 v{vFA}, {FS}, v{vFA}'], sB)
    f3i.nb = o.get('f3p', 80)
    x.append(f3i)
    gld = Item([f's_lshl_b32 {sA}, {sSB}, 1', f's_add_u32 {sA}, {sA}, {sP}', f's_lshl_b32 {sA}, {sA}, 8', f's_add_u32 {sA}, {sA}, {WS_G}',
                (f'buffer_load_dwordx2 v[{vG}:{vG+1}], v{gGA}, {SRD_WS}, {sA} offen sc1', 'gld2')])
    f3c = poll_check(sB, 'f3'); f3c.nb = o.get('f3c', 98); x.append(f3c)
    x.append(Item([f's_add_u32 m0, {sU}, 2048', (f'buffer_load_dwordx4 v{gY}, {SRD_WS}, 0 offen sc1 lds', 'qy'), f'v_add_u32 v{T}, {65536-1024}, v{gY}',
                   (f'buffer_load_dwordx4 v{T}, {SRD_WS}, 0 offen offset:1024 sc1 lds', 'qy')]))
    QV, YV, AT = hslot(7)[1], hslot(8)[1], hslot(9)[1]
    X = 16 + 64 + 0
    qg_items = [Item([('@waitvm', 'qd'), f'ds_read_b64 v[{QV}:{QV+1}], v{gQR}'], nb=o.get('qgb', 60))]
    qg_items += [Item([f'ds_read_b64 v[{QV+2*m}:{QV+2*m+1}], v{gQR} offset:{16*m}'], gap=2 if m == 3 else 0) for m in range(1, 4)]
    for i in range(8):
        qg_items += [Item([t]) for t in (f'v_lshlrev_b32 v{AT+2*i}, 16, v{QV+i}', f'v_and_b32 v{AT+2*i+1}, 0xffff0000, v{QV+i}',
                                         f'v_mul_f32 v{AT+2*i}, v{AT+2*i}, v{vG}', f'v_mul_f32 v{AT+2*i+1}, v{AT+2*i+1}, v{vG}')]
    k = x.index(f3i)
    x = x[:k] + [gld] + qg_items + x[k:]
    if o.get('nof3'): x = x[1:x.index(f3i)]
    if o.get('nox'): x = []
    qx['items'] = x
    for t in range(a.hnext, 28): qh['items'] += h_load(t)
    for i, it in enumerate(qh['items']):
        t = a.hnext + i//2
        it.nb = max(4*(t - o.get('lah', 5)), 0 if t < NH else 4*(t - NH) + 4)
    NL = o.get('nl', 5)
    def need(p):
        t = H_ORD[p]
        while any(g == f'wr{t}' for it in qw['items'] for tt, g in it.ins if tt != '@waitlg'): sc.emit(qw['items'].pop(0))
        while any(g == f'h{p}' for it in qh['items'] for _, g in it.ins): sc.emit(qh['items'].pop(0))
    def mf(p, sg):
        t = H_ORD[p]; ty, hb = hslot(p % NH); al, be = sg >> 1, sg & 1
        return mfma32(G2ACC + 16*sg, f'a[{8*t+4*al}:{8*t+4*al+3}]', f'{ty}[{hb+4*be}:{hb+4*be+3}]', p == 0)
    for p in range(28 - NL):
        need(p)
        if p + o.get('lah', 5) >= 28 - NL:
            for it in qh['items']: it.nb = min(it.nb, sc.beat + 4)
        if p in (1, 4, 7, 10, 14, 17, 21): stamp(a, 0, f'g2t{p}')
        for sg in range(4): sc.step(mf(p, sg), [], cap=o.get('cap2', 5))
    for p in range(28 - NL, 28): need(p)
    sc.drain(qw); sc.drain(qh)
    A = G2ACC
    qr = sc.queue('red', [])
    for sg in (1, 2, 3, 0):
        for p in range(28 - NL, 28): sc.step(mf(p, sg), [], cap=o.get('cap2', 5))
        if sg:
            it = [Item([f's_xor_b32 {sWT}, {sW}, {sg}', f's_lshl_b32 {sWT}, {sWT}, 12', f's_add_u32 {sWT}, {sWT}, {G2_RL + (sg-1)*16384}',
                        f'v_add_u32 v{gRW}, {sWT}, v{vL16}'], nb=sc.beat)]
            it += [Item([f'ds_write_b128 v{gRW}, v[{A+16*sg+4*m}:{A+16*sg+4*m+3}] offset:{1024*m}'], nb=sc.beat + 2, gap=1) for m in range(4)]
            qr['items'] += it
    stamp(a, 0, 'g2end')
    sc.drain(qr); sc.drain(qx)
    a('s_waitcnt lgkmcnt(0)\ns_barrier')
    stamp_lazy(a, 'red')
    X = hslot(11)[1]
    for sg in range(1, 4):
        for m in range(4):
            b = X + 16*(sg-1) + 4*m
            a(f'ds_read_b128 v[{b}:{b+3}], v{gRR} offset:{(sg-1)*16384 + 1024*m}')
    for sg in range(1, 4):
        for i in range(0, 16, 2):
            b = X + 16*(sg-1) + i
            a(f'v_pk_add_f32 v[{A+i}:{A+i+1}], v[{A+i}:{A+i+1}], v[{b}:{b+1}]')
    a.wait_vm('qy')
    for m in range(4): a(f'ds_read_b64_tr_b16 v[{YV+2*m}:{YV+2*m+1}], v{gYR} offset:{512*m}')
    for i in range(16): a(f'v_mul_f32 v{A+i}, v{A+i}, v{vG+1}')
    for i in range(8):
        a(f'''v_lshlrev_b32 v{QV+i}, 16, v{YV+i}
              v_and_b32 v{YV+i}, 0xffff0000, v{YV+i}
              v_fma_f32 v{AT+2*i}, v{AT+2*i}, v{QV+i}, v{A+2*i}
              v_fma_f32 v{AT+2*i+1}, v{AT+2*i+1}, v{YV+i}, v{A+2*i+1}''')
    for i in range(8): a(f'v_cvt_pk_bf16_f32 v{A+i}, v{AT+2*i}, v{AT+2*i+1}')
    for m in range(4): a(f'ds_write_b64 v{gOW}, v[{A+2*m}:{A+2*m+1}] offset:{16*m}')
    osc = {0: '', 1: 'sc1', 2: 'nt', 3: 'sc0 sc1'}[o.get('osc', 1)]
    a(f'''ds_read_b128 v[{X}:{X+3}], v{gOR}
          ds_read_b128 v[{X+4}:{X+7}], v{gOR} offset:{16*80}
          s_mov_b32 s3, 16384
          buffer_store_dwordx4 v[{X}:{X+3}], v{gOS}, {SRD_OUT}, 0 offen {osc}
          buffer_store_dwordx4 v[{X+4}:{X+7}], v{gOS}, {SRD_OUT}, s3 offen {osc}''')
    stamp(a, 0, 'ost')

def body(opts, NT, outname):
    a = Asm(); a.opts = opts; a.outname = outname + ('' if NT == 4 else '.light'); a.NT = NT; a.nlabel = 1000*NT
    prologue(a); g1_main(a); conv_main(a); g2_main(a)
    if opts.get('stamps'): a.fence()
    stamp(a, 0, 'end'); stamp_flush(a)
    a('s_endpgm')
    return finalize(a)

def build(opts, outname='x'):
    global H_ORD, W_ORD
    OPT.update(opts)
    if opts.get('hord', 1) == 1: H_ORD = H_ORD1
    if opts.get('word', 0) == 1: W_ORD = W_ORD1
    kname = NAME + '_kernel'
    body_ = entry_stub(opts) + body(opts, 4, outname) + '\nL_light:\n' + body(opts, 2, outname) + '\nL_end:\n    s_endpgm'
    hdr = open('cdna_kernels/' + NAME + '.s.ref').read().split('; Override launch')[0]
    diag = 'diaga' in opts
    out = [hdr.rstrip(), '; Single persistent launch: 256 workgroups (one per CU), phases chained by flags in d_ws.']
    if diag:
        from gen import diag_body
        out.append(f'; @launch kernel={kname} grid=(256,1,1) block=(256,1,1) lds={LDS_TOTAL}')
        out.append(f'; @launch kernel=diag_kernel grid=(256,1,1) block=(256,1,1) lds=0')
    else:
        out.append(f'; @launch grid=(256,1,1) block=(256,1,1) lds={LDS_TOTAL}')
    out.append(f'''.amdgcn_target "amdgcn-amd-amdhsa--gfx950"
.text
.globl {kname}
.p2align 8
.type {kname},@function
{kname}:
{body_}''')
    names = [kname]
    if diag:
        out.append(f'.globl diag_kernel\n.p2align 8\n.type diag_kernel,@function\ndiag_kernel:\n' + diag_body(opts['diaga'], opts['diagb'], opts.get('mult', 10)))
        names.append('diag_kernel')
    out.append('.section .rodata,"a"')
    for n in names:
        out.append(f'''.p2align 6
.amdhsa_kernel {n}
  .amdhsa_next_free_vgpr 512
  .amdhsa_next_free_sgpr 102
  .amdhsa_accum_offset 256
  .amdhsa_group_segment_fixed_size 0
  .amdhsa_kernarg_size 112
  .amdhsa_user_sgpr_count 2
  .amdhsa_user_sgpr_kernarg_segment_ptr 1
  .amdhsa_system_sgpr_workgroup_id_x 1
  .amdhsa_float_denorm_mode_32 3
.end_amdhsa_kernel''')
    return '\n'.join(out) + '\n'

if __name__ == '__main__':
    opts = {k: int(v) for k, v in (kv.split('=') for kv in sys.argv[2:])}
    txt = build(opts, sys.argv[1])
    open(sys.argv[1], 'w').write(txt)
    c = stats(txt)
    print(len(txt), 'bytes;', sum(c.values()), 'instr;', 's_nop', c['s_nop'], 's_waitcnt', c['s_waitcnt'])
```
